```python
import torch

def _softmax(x, axis=-1):
    return torch.softmax(x, dim=axis)

def _gelu(x):
    return torch.nn.functional.gelu(x, approximate='tanh')

def _silu(x):
    return torch.nn.functional.silu(x)

def _sigmoid(x):
    return torch.sigmoid(x)

def _layernorm(x, axis=-1, eps=1e-05):
    m = x.mean(dim=axis, keepdim=True)
    v = x.var(dim=axis, keepdim=True, unbiased=False)
    return (x - m) / torch.sqrt(v + eps)

def _scatter_add(tgt, idx, src, axis=0):
    return tgt.clone().index_add_(axis, idx, src)

def _segment_sum(src, seg, n):
    out = torch.zeros((n,) + src.shape[1:], dtype=src.dtype)
    return out.index_add_(0, seg, src)

def _pad(x, pw):
    flat = tuple((v for pair in reversed(pw) for v in pair))
    return torch.nn.functional.pad(x, flat)
kernel_name = 'recurrent_scan__memory_aug_recurrent_mem_tr__glu_gated_reglu__prompt'

def setup_inputs():

    _w = lambda a: (lambda t: t.to(torch.bfloat16) if t.is_floating_point() else t)(torch.as_tensor(a))

    def _A_setup():
        B, S, Dm = (1, 2048, 512)
        H, Dh = (32, 128)
        M, seg = (8, 32)
        seg = min(seg, S)
        S = S // seg * seg
        return {'x': _w((lambda *s: torch.randn(*s, dtype=torch.bfloat16) * 0.1)(B, S, Dm)), 'mem0': _w((lambda *s: torch.randn(*s, dtype=torch.bfloat16) * 1.6)(B, M, Dm)), 'Wq': _w((lambda *s: torch.randn(*s, dtype=torch.bfloat16) * 0.8)(Dm, H, Dh) * Dm ** (-0.5)), 'Wk': _w((lambda *s: torch.randn(*s, dtype=torch.bfloat16) * 0.8)(Dm, H, Dh) * Dm ** (-0.5)), 'Wv': _w((lambda *s: torch.randn(*s, dtype=torch.bfloat16) * 1.6)(Dm, H, Dh) * Dm ** (-0.5)), 'Wo': _w((lambda *s: torch.randn(*s, dtype=torch.bfloat16) * 1.6)(H, Dh, Dm) * (H * Dh) ** (-0.5)), 'seg_len': seg}
    _A_in = _A_setup()

    def _B_setup():
        B, S, D, F = (1, 2048, 512, 1376)
        return {'x': _w((lambda *s: torch.randn(*s, dtype=torch.bfloat16) * 0.1)(B, S, D)), 'W_gate': _w((lambda *s: torch.randn(*s, dtype=torch.bfloat16) * 0.4)(D, F) * (2.0 / D) ** 0.5), 'W_up': _w((lambda *s: torch.randn(*s, dtype=torch.bfloat16) * 0.4)(D, F) * (2.0 / D) ** 0.5), 'W_down': _w((lambda *s: torch.randn(*s, dtype=torch.bfloat16) * 0.4)(F, D) * (1.0 / F) ** 0.5)}
    _B_in = _B_setup()
    return {'A_x': _A_in['x'], 'A_mem0': _A_in['mem0'], 'A_Wq': _A_in['Wq'], 'A_Wk': _A_in['Wk'], 'A_Wv': _A_in['Wv'], 'A_Wo': _A_in['Wo'], 'A_seg_len': _A_in['seg_len'], 'B_x': _B_in['x'], 'B_W_gate': _B_in['W_gate'], 'B_W_up': _B_in['W_up'], 'B_W_down': _B_in['W_down']}

def reference(A_x, A_mem0, A_Wq, A_Wk, A_Wv, A_Wo, A_seg_len, B_x, B_W_gate, B_W_up, B_W_down):

    def _A_ref(x, mem0, Wq, Wk, Wv, Wo, seg_len):
        B, S, Dm = x.shape
        H, Dh = (Wq.shape[1], Wq.shape[2])
        M = mem0.shape[1]
        scale = Dh ** (-0.5)
        n_seg = S // seg_len
        L = M + seg_len
        idx = torch.arange(L)
        mask = (idx[:, None] < M) | (idx[:, None] >= idx[None, :])
        mem = mem0
        outs = []
        for s in range(n_seg):
            xs = x[:, s * seg_len:(s + 1) * seg_len, :].clone()
            h = torch.concatenate([mem, xs], axis=1)
            q = torch.einsum('btd,dhe->bhte', h, Wq)
            k = torch.einsum('btd,dhe->bhte', h, Wk)
            v = torch.einsum('btd,dhe->bhte', h, Wv)
            scores = torch.einsum('bhqe,bhke->bhqk', q, k) * scale
            scores = torch.where(mask[None, None], scores, -1000000000.0)
            p = _softmax(scores, axis=-1)
            o = torch.einsum('bhqk,bhke->bhqe', p, v)
            o = torch.einsum('bhte,hed->btd', o, Wo)
            mem = o[:, :M, :].clone()
            outs.append(o[:, M:, :])
        return torch.concatenate(outs, axis=1)

    def _B_ref(x, W_gate, W_up, W_down):
        gate = torch.einsum('bsd,df->bsf', x, W_gate)
        up = torch.einsum('bsd,df->bsf', x, W_up)
        gate = gate * (lambda x, dt: x.to(dt))(gate > 0, gate.dtype)
        h = gate * up
        return torch.einsum('bsf,fd->bsd', h, W_down)
    x = A_x
    xn = _layernorm(x, axis=-1)
    s = _A_ref(xn, A_mem0, A_Wq, A_Wk, A_Wv, A_Wo, A_seg_len)
    g = _silu(_B_ref(xn, B_W_gate, B_W_up, B_W_down))
    return x + s * g
```

```python
import re

class Asm:
    def __init__(self):
        self.lines = []
        self._uid = 0
    def __call__(self, s):
        for ln in s.split("\n"):
            ln = ln.strip()
            if ln:
                self.lines.append(ln)
    def label(self, name):
        self.lines.append(name + ":")
    def uid(self, p="L"):
        self._uid += 1
        return f"{p}_{self._uid}"
    def text(self):
        out = []
        for ln in self.lines:
            if ln.endswith(":") or ln.startswith(".") or ln.startswith(";"):
                out.append(ln)
            else:
                out.append("    " + ln)
        return "\n".join(out) + "\n"

def v(a, n=1):
    return f"v{a}" if n == 1 else f"v[{a}:{a+n-1}]"
def a(a_, n=1):
    return f"a{a_}" if n == 1 else f"a[{a_}:{a_+n-1}]"
def s(a_, n=1):
    return f"s{a_}" if n == 1 else f"s[{a_}:{a_+n-1}]"
def R(x, n=1):
    return v(x, n) if x < 256 else a(x - 256, n)

_reg = re.compile(r"\b([vas])(?:\[(\d+):(\d+)\]|(\d+))\b|\b(vcc|exec|m0)\b")
def regs_of(op):
    out = set()
    op = op.replace("]", "] ")
    for m in re.finditer(r"(?<![\w])([vas])\[(\d+):(\d+)\]|(?<![\w])([vas])(\d+)(?![\w\[])|(?<![\w])(vcc|exec|m0)(?![\w])", op):
        if m.group(1):
            for i in range(int(m.group(2)), int(m.group(3)) + 1):
                out.add(m.group(1) + str(i))
        elif m.group(4):
            out.add(m.group(4) + m.group(5))
        else:
            out.add(m.group(6))
    return out

TRANS = ("v_exp_f32", "v_log_f32", "v_rcp_f32", "v_rsq_f32", "v_sqrt_f32", "v_sin_f32", "v_cos_f32")
def parse(ln):
    ln = ln.split(";")[0].strip()
    if not ln or ln.endswith(":") or ln.startswith("."):
        return None
    parts = ln.split(None, 1)
    mn = parts[0]
    ops = [o.strip() for o in parts[1].split(",")] if len(parts) > 1 else []
    d = dict(mn=mn, ln=ln, w=set(), r=set(), kind="other", srcc=set(), ab=set(), data=set())
    if mn.startswith("v_mfma") or mn.startswith("v_smfmac"):
        d["kind"] = "mfma"
        d["passes"] = 8 if "32x32" in mn else (2 if "4x4" in mn else 4)
        d["w"] = regs_of(ops[0])
        d["ab"] = regs_of(ops[1]) | regs_of(ops[2])
        if mn.startswith("v_smfmac"):
            d["srcc"] = regs_of(ops[0]); d["ab"] |= regs_of(ops[3].split()[0])
        else:
            d["srcc"] = regs_of(ops[3].split()[0])
        d["r"] = d["ab"] | d["srcc"]
    elif mn.startswith("v_"):
        d["kind"] = "valu"
        if mn.startswith("v_cmp"):
            d["w"] = regs_of(ops[0]); d["r"] = set().union(*[regs_of(o) for o in ops[1:]])
            if mn.startswith("v_cmpx"): d["w"].add("exec")
        elif "permlane" in mn and "swap" in mn:
            d["w"] = regs_of(ops[0]) | regs_of(ops[1]); d["r"] = set(d["w"]); d["perm"] = True
        elif mn.startswith("v_add_co") or mn.startswith("v_addc_co") or mn.startswith("v_sub_co"):
            d["w"] = regs_of(ops[0]) | regs_of(ops[1]); d["r"] = set().union(*[regs_of(o) for o in ops[2:]])
        else:
            d["w"] = regs_of(ops[0]) if ops else set()
            d["r"] = set().union(*[regs_of(o) for o in ops[1:]]) if len(ops) > 1 else set()
            if mn.startswith("v_fmac") or mn.startswith("v_pk_fmac") or "dpp" in ln or "row_" in ln or "quad_perm" in ln:
                d["r"] |= d["w"]
            if "row_" in ln or "quad_perm" in ln or "wave_" in ln: d["dpp"] = True
            if mn.startswith("v_cndmask") and len(ops) == 3: d["r"].add("vcc")
        if mn.split("_e")[0] in TRANS or mn in TRANS: d["trans"] = True
        if mn.startswith("v_readfirstlane") or mn.startswith("v_readlane"): d["rdlane"] = True
    elif mn.startswith("buffer_") or mn.startswith("global_") or mn.startswith("ds_"):
        d["kind"] = "ds" if mn.startswith("ds_") else "vmem"
        allr = [regs_of(o) for o in ops]
        is_store = "store" in mn or "write" in mn or ("atomic" in mn and " sc0" not in ln) or mn.startswith("ds_add")
        lds_dma = (" lds" in ln) or ("load_lds" in mn)
        if mn in ("buffer_inv", "buffer_wbl2"):
            pass
        elif is_store or lds_dma:
            d["r"] = set().union(*allr) if allr else set()
            if lds_dma: d["r"].add("m0"); d["dma"] = True
            if is_store and d["kind"] == "vmem":
                di = 0 if mn.startswith("buffer_") else 1
                d["data"] = allr[di]
                d["wide"] = mn.endswith("x4") or mn.endswith("x3")
        else:
            d["w"] = allr[0]; d["r"] = set().union(*allr[1:]) if len(allr) > 1 else set()
    elif mn.startswith("s_"):
        d["kind"] = "salu"
        if mn == "s_nop":
            d["nop"] = int(ops[0], 0) + 1
        elif mn.startswith("s_cmp") or mn.startswith("s_cbranch") or mn in ("s_branch", "s_waitcnt", "s_barrier", "s_endpgm", "s_sleep", "s_setprio") or mn.startswith("s_bitcmp"):
            d["r"] = set().union(*[regs_of(o) for o in ops]) if ops and not mn.startswith("s_cbranch") and mn != "s_branch" and mn != "s_waitcnt" else set()
        else:
            d["w"] = regs_of(ops[0]) if ops else set()
            d["r"] = set().union(*[regs_of(o) for o in ops[1:]]) if len(ops) > 1 else set()
            if "saveexec" in mn: d["w"].add("exec")
    return d

def isv(r): return r[0] in "va" and r not in ("vcc",)
def check_hazards(lines, verbose=True):
    ins = [p for p in (parse(l) for l in lines) if p]
    probs = []
    n = len(ins)
    for i, c in enumerate(ins):
        dist = 0
        j = i - 1
        while j >= 0 and dist < 20:
            p = ins[j]
            need = 0; why = ""
            pv = {r for r in p["w"] if isv(r)}
            ps = {r for r in p["w"] if not isv(r)}
            if p["kind"] == "valu":
                if c["kind"] == "mfma" and pv & c["r"]: need, why = 2, "valu->mfma"
                if c.get("perm") and pv & c["r"]: need, why = max(need, 2), "valu->permlane"
                if c.get("dpp") and pv & c["r"]: need, why = max(need, 2), "valu->dpp"
                if c.get("rdlane") and pv & c["r"]: need, why = max(need, 1), "valu->readlane"
                if p.get("trans") and c["kind"] == "valu" and not c.get("trans") and pv & c["r"]: need, why = max(need, 1), "trans->valu"
                if p.get("trans") and c["kind"] == "mfma" and pv & c["r"]: need, why = max(need, 2), "trans->mfma"
                if ps - {"exec"}:
                    if c["kind"] == "valu" and (ps - {"exec"}) & c["r"]: need, why = max(need, 2), "valu sgpr->valu"
                    if c["kind"] == "vmem" and ps & c["r"]: need, why = max(need, 5), "valu sgpr->vmem"
                if "exec" in ps and (c["kind"] == "mfma" or c.get("perm") or c.get("rdlane")): need, why = max(need, 4), "valu exec"
            if p["kind"] == "mfma":
                ps_ = p["passes"]
                t = {2: 5, 4: 8, 8: 12, 16: 20}[ps_]
                if c["kind"] == "mfma":
                    if p["w"] & c["ab"]: need, why = t, "mfma->mfma AB"
                    if p["w"] & c["srcc"]:
                        if p["w"] == c["srcc"] and c["mn"] == p["mn"]:
                            if ps_ == 2: need, why = max(need, 2), "mfma chain"
                        else: need, why = max(need, {2: 5, 4: 8, 8: 12, 16: 20}[ps_]), "mfma->C overlap"
                    elif p["w"] & c["w"]:
                        need, why = max(need, {2: 4, 4: 6, 8: 10, 16: 18}[ps_]), "mfma WAW mfma"
                elif c["kind"] in ("valu", "vmem", "ds"):
                    if p["w"] & (c["r"] | c["w"]): need, why = t, "mfma->valu/mem"
                    if c["kind"] == "valu" and p["srcc"] & c["w"]: need, why = max(need, {2: 1, 4: 3, 8: 7, 16: 15}[ps_]), "mfma C WAR"
            if p["kind"] == "vmem" and p.get("wide") and p["data"] & c["w"]:
                need, why = max(need, 2 if c["kind"] == "valu" else 1), "store data WAR"
            if p["kind"] == "salu" and "m0" in p["w"] and c.get("dma"): need, why = max(need, 1), "m0->dma"
            if need > dist:
                probs.append((why, need, dist, p["ln"], c["ln"]))
            dist += p.get("nop", 1)
            j -= 1
    if verbose:
        for pr in probs: print("HAZARD", pr)
    return probs
```

```python
from asmlib import *
from layout import *

WS = 4
SA = 8
sH, sW, sS = 20, 21, 22
sCur, sNxt, sPoi = 23, 24, 25
sKX, sVX, sPub, sW10 = 26, 27, 28, 29
sRetry, sT0, sT1, sT2, sT3 = 30, 32, 33, 34, 35
sC = 72
sOne = 74
sM0a, sM0b = 36, 37
sRdy = 31
KVWAIT = True
sTag = 38
sTime = 40
R_ML, R_MH, R_P0, R_P1, R_IL, R_IH = 48, 52, 56, 60, 64, 68
R_W = 76

L_KX = 0
L_Q = 16384
L_M = 20480
L_O = L_M
L_SEL = 28672
L_W = 29696
LDS_CHAIN = L_W + 131072

M = 0
ST = 32
AQ, AK, AV = 64, 72, 80
QF = 88
VXR = [104, 112]
vIdx, vL16, vWL, vOw, vQKw, vTR, vPart, vRed = 120, 121, 122, 123, 124, 125, 126, 127
WQ = 128
WV = 256
KRES = {2: 0, 3: 1, 6: 2, 7: 3}
KLDS = {0: 0, 1: 1, 4: 2, 5: 3}
WK = 256 + 128
WO = 256 + 192
def wo_lds(tau, b):
    slot = 4 + (0 if tau < 2 else 2) + b
    return slot*4096 + (tau & 1)*2048
PUB = 100
DELAY_L = 0
PERIOD = 24
DELAY_E = 20

STAMP = False
NOPF = 0
DELAY_R = 0
GAP_R = 0
SWZ = 0
NOWN = 5
NV0 = 4
NV1 = 5
NV2 = 4
RDELAY_E = 0
RDELAY_L = 0
RPRE = 24
STAMP_STEP = 41
NST = 12
PACE = 13
SMAP = {}
def stamp(A, k):
    if not STAMP: return
    m = {1: {i: i for i in range(12)},
         2: {0: 0, 7: 1, 20: 2, 21: 3, 8: 4, 22: 5, 23: 6, 24: 7, 25: 8, 9: 9, 10: 10, 11: 11},
         3: {0: 0, 30: 1, 31: 2, 1: 3, 32: 4, 33: 5, 34: 6, 35: 7, 2: 8, 36: 9, 3: 10, 11: 11}}[STAMP]
    if k in m: A(f"s_memtime {s(76+2*m[k],2)}")
def stamp_dump(A):
    if not STAMP: return
    sk = A.uid("SD")
    A(f"s_cmp_lg_u32 {s(sS)}, {STAMP_STEP}")
    A(f"s_cbranch_scc1 {sk}")
    A("s_waitcnt lgkmcnt(0)")
    A(f"""
    s_lshl_b32 {s(sT0)}, {s(sH)}, 2
    s_add_u32 {s(sT0)}, {s(sT0)}, {s(sW)}
    s_lshl_b32 {s(sT0)}, {s(sT0)}, 6
    s_add_u32 {s(sT0)}, {s(sT0)}, {DIAG+4096}
    v_mov_b32 v102, 0
    """)
    for k in range(NST):
        A(f"v_mov_b32 v103, {s(76+2*k)}")
        A(f"buffer_store_dword v103, v102, {s(WS,4)}, {s(sT0)} offen offset:{4*k}")
    A.label(sk)

def smf_s(d, am, b):
    return f"v_smfmac_f32_16x16x64_bf16 {v(d,4)}, {v(am,4)}, {R(b,8)}, {v(vIdx)}"
def mf_s(d, a_, b_, c):
    return f"v_mfma_f32_16x16x32_bf16 {v(d,4)}, {v(a_,4)}, {v(b_,4)}, {c}"

def srd(A, dst, ptr_off, size):
    A(f"s_load_dwordx2 {s(dst,2)}, s[0:1], {ptr_off}")
    A(f"s_mov_b32 {s(dst+2)}, {size}")
    A(f"s_mov_b32 {s(dst+3)}, 0x20000")
    A("s_waitcnt lgkmcnt(0)")

def sub_srd(A, dst, off_const, off_sgpr=None):
    if off_sgpr is None:
        A(f"s_add_u32 {s(dst)}, {s(WS)}, {off_const}")
    else:
        A(f"s_add_u32 {s(sT3)}, {s(off_sgpr)}, {off_const}")
        A(f"s_add_u32 {s(dst)}, {s(WS)}, {s(sT3)}")
    A(f"s_addc_u32 {s(dst+1)}, {s(WS+1)}, 0")
    A(f"s_mov_b32 {s(dst+2)}, {3*SLOT}")
    A(f"s_mov_b32 {s(dst+3)}, 0x20000")

def chain_setup(A):
    A(f"""
    v_and_b32 v1, 63, v0            ; lane
    v_lshlrev_b32 {v(vL16)}, 4, v1
    v_and_b32 v2, 15, v1            ; c = l&15
    v_lshrrev_b32 v3, 4, v1         ; g = l>>4
    v_and_b32 v4, 3, v1             ; c' = l&3
    v_bfe_u32 v5, v1, 2, 2          ; r' = (l>>2)&3
    v_mov_b32 v6, 0x4444
    v_mov_b32 v7, 0xEEEE
    v_cmp_gt_u32 vcc, 2, v4
    s_nop 1
    v_cndmask_b32 {v(vIdx)}, v7, v6, vcc
    s_lshl_b32 {s(sT1)}, {s(sW)}, 9
    v_mov_b32 v6, {L_O}
    v_mov_b32 v7, {L_O+2048}
    v_cndmask_b32 v6, v7, v6, vcc
    v_and_b32 v7, 1, v3
    v_lshlrev_b32 v7, 1, v7
    v_xor_b32 v7, v7, v2
    v_lshl_add_u32 v6, v7, 4, v6
    v_lshrrev_b32 v7, 1, v3
    v_lshl_add_u32 v6, v7, 8, v6
    v_add_u32 {v(vOw)}, {s(sT1)}, v6
    ; vWL
    s_lshl_b32 {s(sT0)}, {s(sW)}, 15
    s_add_u32 {s(sT0)}, {s(sT0)}, {L_W}
    v_add_u32 {v(vWL)}, {s(sT0)}, {v(vL16)}
    ; vQKw = L_Q + w*1024 + c*32 + ((g + (c>>2))&3)*8
    s_lshl_b32 {s(sT1)}, {s(sW)}, 10
    s_add_u32 {s(sT1)}, {s(sT1)}, {L_Q}
    v_add_u32 v6, v3, v5
    v_and_b32 v6, 3, v6
    v_lshlrev_b32 v6, 3, v6
    v_lshl_add_u32 v6, v2, 5, v6
    v_add_u32 {v(vQKw)}, {s(sT1)}, v6
    ; vTR = L_Q + (l>>2)*32 + ((c' + g)&3)*8
    v_add_u32 v6, v3, v4
    v_and_b32 v6, 3, v6
    v_lshlrev_b32 v6, 3, v6
    v_lshrrev_b32 v7, 2, v1
    v_lshl_add_u32 v6, v7, 5, v6
    v_add_u32 {v(vTR)}, {L_Q}, v6
    ; vPart = (4w+g)*8192 + c*16 + h*256
    s_lshl_b32 {s(sT2)}, {s(sW)}, 15
    s_lshl_b32 {s(sT1)}, {s(sW)}, 2
    s_mul_i32 {s(sT1)}, {s(sT1)}, {SWZ}
    s_add_u32 {s(sT1)}, {s(sT1)}, {s(sH)}
    v_mul_u32_u24 v7, {SWZ}, v3
    v_add_u32 v7, {s(sT1)}, v7
    v_and_b32 v7, 31, v7
    v_lshlrev_b32 v6, 13, v3
    v_lshl_add_u32 v6, v2, 2, v6
    v_lshl_add_u32 v6, v7, 8, v6
    v_add_u32 {v(vPart)}, {s(sT2)}, v6
    v_lshlrev_b32 v6, 4, v3
    v_lshl_add_u32 v6, v5, 1, v6
    v_and_b32 v7, 1, v2
    v_add_u32 v6, v6, v7
    v_lshlrev_b32 v6, 4, v6
    v_and_b32 v7, 2, v2
    v_lshl_add_u32 v6, v7, 2, v6
    s_lshr_b32 {s(sT1)}, {s(sH)}, 2
    s_lshl_b32 {s(sT1)}, {s(sT1)}, 10
    s_and_b32 {s(sT2)}, {s(sH)}, 3
    s_lshl_b32 {s(sT2)}, {s(sT2)}, 6
    s_add_u32 {s(sT1)}, {s(sT1)}, {s(sT2)}
    v_add_u32 v6, {s(sT1)}, v6
    v_mov_b32 v7, 0x80000000
    v_cmp_gt_u32 vcc, 8, v2
    s_nop 1
    v_cndmask_b32 v6, v7, v6, vcc
    v_cmp_gt_u32 vcc, 64, v0
    s_nop 1
    v_cndmask_b32 {v(vRed)}, v7, v6, vcc
    v_and_b32 v6, 1, v2
    v_lshlrev_b32 v6, 4, v6
    v_mov_b32 v7, 0x3f80
    v_lshlrev_b32 v6, v6, v7
    v_lshrrev_b32 v7, 1, v2
    """)
    for rho in range(4):
        A(f"v_cmp_eq_u32 vcc, {rho}, v7")
        A("s_nop 1")
        A(f"v_cndmask_b32 v{8+rho}, 0, v6, vcc")
    A(f"ds_write_b128 {v(vL16)}, v[8:11] offset:{L_SEL}")
    A(f"""
    v_lshrrev_b32 v6, 2, v1         ; p = l>>2 (slot 0..15)
    v_and_b32 v7, 9, v6             ; b3,b0
    v_bfe_u32 v12, v6, 1, 1
    v_lshl_add_u32 v7, v12, 2, v7   ; p.b1 -> d.b2
    v_bfe_u32 v12, v6, 2, 1
    v_lshl_add_u32 v7, v12, 1, v7   ; p.b2 -> d.b1   => v7 = d
    v_lshlrev_b32 v12, 4, v4        ; chunk*16
    v_lshl_add_u32 v17, v7, 10, v12
    v_and_b32 v13, 3, v7
    v_lshrrev_b32 v7, 2, v7
    v_lshl_add_u32 v7, v13, 2, v7
    v_lshl_add_u32 v16, v7, 13, v12
    v_lshrrev_b32 v6, 1, v3
    v_lshlrev_b32 v6, 4, v6
    v_lshrrev_b32 v7, 1, v5
    v_lshl_add_u32 v6, v7, 3, v6
    v_and_b32 v7, 1, v3
    v_lshl_add_u32 v6, v7, 1, v6
    v_and_b32 v7, 1, v5
    v_add_u32 v6, v6, v7
    v_lshlrev_b32 v6, 6, v6
    v_add_u32 v6, {s(sT0)}, v6
    v_lshl_add_u32 v18, v4, 4, v6
    v_lshl_add_u32 v19, v4, 3, v6
    """)
    sub_srd(A, R_ML, RING + MEMO)
    sub_srd(A, R_MH, RING + MEMO + 4096)
    sub_srd(A, R_P0, RING)
    sub_srd(A, R_P1, RING + 131072)
    A(f"s_lshl_b32 {s(sT1)}, {s(sH)}, 13")
    sub_srd(A, R_IL, RING, sT1)
    sub_srd(A, R_IH, RING + 4096, sT1)
    A(f"""
    s_mov_b32 {s(sCur)}, 0
    s_mov_b32 {s(sNxt)}, {SLOT}
    s_mov_b32 {s(sPoi)}, {2*SLOT}
    """)

def chain_load_weights(A):
    for i, off in enumerate((16, 32, 40, 24)):
        A(f"s_load_dwordx2 {s(R_W+4*i,2)}, s[0:1], {off}")
        A(f"s_mov_b32 {s(R_W+2+4*i)}, 0x400000")
        A(f"s_mov_b32 {s(R_W+3+4*i)}, 0x20000")
    A(f"""
    s_lshl_b32 {s(sT0)}, {s(sW)}, 15
    s_add_u32 {s(sT0)}, {s(sT0)}, {L_W}
    s_lshl_b32 {s(sT1)}, {s(sH)}, 8
    s_lshl_b32 {s(sT2)}, {s(sW)}, 6
    s_add_u32 {s(sT1)}, {s(sT1)}, {s(sT2)}
    s_lshl_b32 {s(sT2)}, {s(sH)}, 17
    s_lshl_b32 {s(sT3)}, {s(sW)}, 7
    s_add_u32 {s(sT2)}, {s(sT2)}, {s(sT3)}
    s_waitcnt lgkmcnt(0)
    """)
    blocks = []
    for b in range(8): blocks.append(("q", b))
    for b in KRES: blocks.append(("k", b))
    for b in range(8): blocks.append(("v", b))
    for pi in (1, 2):
        for b in range(2): blocks.append(("o", pi, b))
    for b in KLDS: blocks.append(("k", b))
    for pi in (0, 3):
        for b in range(2): blocks.append(("o", pi, b))
    def issue(n):
        blk = blocks[n]
        slot = n % 8
        for i in range(4):
            A(f"s_add_u32 m0, {s(sT0)}, {slot*4096 + i*1024}")
            if blk[0] == "o":
                _, pi, b = blk
                off = (64*b + 16*i)*1024 + (pi >> 1)*512 + (pi & 1)*64
                A(f"s_add_u32 {s(sT3)}, {s(sT2)}, {off}")
                A(f"buffer_load_dwordx4 v17, {s(R_W+8,4)}, {s(sT3)} offen lds")
            else:
                sr = R_W + {"q": 0, "v": 4, "k": 12}[blk[0]]
                bl = blk[1]
                off = (64*4*(bl & 1) + 16*i)*8192
                A(f"s_xor_b32 {s(sT3)}, {s(sW)}, {bl >> 1}")
                A(f"s_lshl_b32 {s(sT3)}, {s(sT3)}, 19")
                A(f"s_add_u32 {s(sT3)}, {s(sT3)}, {s(sT1)}")
                A(f"s_add_u32 {s(sT3)}, {s(sT3)}, {off}")
                A(f"buffer_load_dwordx4 v16, {s(sr,4)}, {s(sT3)} offen lds")
    for n in range(8): issue(n)
    for n in range(32):
        blk = blocks[n]
        slot = n % 8
        newer = min(7, 31 - n)
        A(f"s_waitcnt vmcnt({4*newer})")
        for t in range(2):
            if n >= 24: dst = 32 + t*8
            elif blk[0] == "q": dst = WQ + (blk[1]*2 + t)*8
            elif blk[0] == "v": dst = WV + (blk[1]*2 + t)*8
            elif blk[0] == "o": dst = WO + ((blk[1]*2 + t - 2)*2 + blk[2])*8
            else: dst = WK + (KRES[blk[1]]*2 + t)*8
            for nn in range(4):
                off = slot*4096 + 2048*(nn >> 1) + 256*(nn & 1)
                if blk[0] == "o":
                    A(f"ds_read_b64_tr_b16 {R(dst+2*nn,2)}, v19 offset:{off + 32*t}")
                else:
                    A(f"ds_read_b64_tr_b16 {R(dst+2*nn,2)}, v18 offset:{off + 8*t}")
        A("s_waitcnt lgkmcnt(0)")
        if n >= 24:
            for t in range(2):
                for hf in range(2):
                    A(f"ds_write_b128 {v(vWL)}, {v(32+t*8+hf*4,4)} offset:{slot*4096 + t*2048 + hf*1024}")
            A("s_waitcnt lgkmcnt(0)")
        if n + 8 < 32: issue(n + 8)

def chain_init_comm(A):
    A(f"""
    v_mov_b64 v[20:21], -1
    v_mov_b64 v[22:23], -1
    s_nop 0
    buffer_store_dword v20, {v(vPart)}, {s(R_P0,4)}, 0 offen offset:0 sc1
    buffer_store_dword v20, {v(vPart)}, {s(R_P0,4)}, 0 offen offset:64 sc1
    buffer_store_dword v20, {v(vPart)}, {s(R_P0,4)}, 0 offen offset:128 sc1
    buffer_store_dword v20, {v(vPart)}, {s(R_P0,4)}, 0 offen offset:192 sc1
    buffer_store_dword v20, {v(vPart)}, {s(R_P1,4)}, 0 offen offset:0 sc1
    buffer_store_dword v20, {v(vPart)}, {s(R_P1,4)}, 0 offen offset:64 sc1
    buffer_store_dword v20, {v(vPart)}, {s(R_P1,4)}, 0 offen offset:128 sc1
    buffer_store_dword v20, {v(vPart)}, {s(R_P1,4)}, 0 offen offset:192 sc1
    buffer_store_dwordx2 v[20:21], {v(vRed)}, {s(R_ML,4)}, {s(sNxt)} offen sc1
    s_lshl_b32 {s(sT0)}, {s(sH)}, 14
    s_lshl_b32 {s(sT1)}, {s(sW)}, 12
    s_add_u32 {s(sT0)}, {s(sT0)}, {s(sT1)}
    s_add_u32 {s(sT0)}, {s(sT0)}, {MPUB}
    buffer_store_dwordx4 v[20:23], {v(vL16)}, {s(WS,4)}, {s(sT0)} offen sc1
    buffer_store_dwordx4 v[20:23], {v(vL16)}, {s(WS,4)}, {s(sT0)} offen offset:1024 sc1
    buffer_store_dwordx4 v[20:23], {v(vL16)}, {s(WS,4)}, {s(sT0)} offen offset:2048 sc1
    buffer_store_dwordx4 v[20:23], {v(vL16)}, {s(WS,4)}, {s(sT0)} offen offset:3072 sc1
    """)
    srd(A, SA, 8, 8192)
    A(f"""
    v_and_b32 v24, 63, v0
    v_and_b32 v25, 1, v24
    v_lshlrev_b32 v25, 10, v25
    v_bfe_u32 v26, v24, 1, 2
    v_lshl_add_u32 v25, v26, 1, v25
    v_lshrrev_b32 v24, 4, v24
    v_lshl_add_u32 v25, v24, 5, v25
    s_and_b32 {s(sT0)}, {s(sH)}, 3
    s_lshl_b32 {s(sT0)}, {s(sT0)}, 11
    s_lshr_b32 {s(sT1)}, {s(sH)}, 2
    s_lshl_b32 {s(sT1)}, {s(sT1)}, 7
    s_add_u32 {s(sT0)}, {s(sT0)}, {s(sT1)}
    buffer_load_ushort v26, v25, {s(SA,4)}, {s(sT0)} offen
    buffer_load_ushort v28, v25, {s(SA,4)}, {s(sT0)} offen offset:8
    buffer_load_ushort v27, v25, {s(SA,4)}, {s(sT0)} offen offset:16
    buffer_load_ushort v29, v25, {s(SA,4)}, {s(sT0)} offen offset:24
    s_waitcnt vmcnt(0)
    v_lshl_or_b32 v26, v28, 16, v26
    v_lshl_or_b32 v27, v29, 16, v27
    v_min_u32 {v(PUB)}, -2, v26
    v_mov_b32 {v(PUB+1)}, v27
    s_nop 0
    buffer_store_dwordx2 {v(PUB,2)}, {v(vRed)}, {s(R_ML,4)}, {s(sCur)} offen sc1
    """)

def pre_step_ops():
    ops = []
    for f in range(4):
        for hf in range(2):
            ops.append(f"ds_read_b128 {v(ST+f*8+hf*4,4)}, {v(vWL)} offset:{f*2048+hf*1024}")
    for r in range(AQ, AV + 8, 2):
        ops.append(f"v_mov_b64 {v(r,2)}, 0")
    ops.append(f"v_add_u32 {v(XA)}, {s(sW10)}, {v(vL16)}")
    for i in range(1, 4): ops.append(f"v_xor_b32 {v(XA+i)}, {i*1024}, {v(XA)}")
    return ops
def pre_step(A):
    for o in pre_step_ops(): A(o)

def prefetch_ops(par_next):
    return [
        f"s_mov_b32 m0, {s(sM0a if par_next == 0 else sM0b)}",
        f"buffer_load_dwordx4 {v(VXR[par_next],4)}, {v(vL16)}, {s(WS,4)}, {s(sVX)} offen sc1",
        f"buffer_load_dwordx4 {v(vL16)}, {s(WS,4)}, {s(sKX)} offen sc1 lds",
        f"buffer_load_dwordx4 {v(VXR[par_next]+4,4)}, {v(vL16)}, {s(WS,4)}, {s(sVX)} offen offset:1024 sc1",
        f"buffer_load_dwordx4 {v(vL16)}, {s(WS,4)}, {s(sKX)} offen offset:1024 sc1 lds",
        f"s_add_u32 {s(sKX)}, {s(sKX)}, {32*8192}",
        f"s_add_u32 {s(sVX)}, {s(sVX)}, {32*8192}"]
def prefetch_kv(A, p):
    for o in prefetch_ops(p): A(o)

XA = QF + 4
def mem_load_s(hi):
    return f"buffer_load_dwordx4 {v(M+4*hi,4)}, {v(XA)}, {s(R_MH if hi else R_ML,4)}, {s(sCur)} offen sc1"
def inb_load_s(j):
    return f"buffer_load_dwordx4 {v(M+4*j,4)}, {v(vL16)}, {s(R_IL if j < 4 else R_IH,4)}, 0 offen offset:{(j%4)*1024} sc1"

def kv_poll(A, lab_fail, first=False):
    lp = A.uid("KP")
    A.label(lp)
    A(f"""
    v_lshrrev_b32 v98, 1, {v(vL16)}
    v_and_b32 v98, 0xff, v98
    s_lshl_b32 {s(sT0)}, {s(sH)}, 8
    s_add_u32 {s(sT0)}, {s(sT0)}, {F_KV}
    buffer_load_dwordx2 v[96:97], v98, {s(WS,4)}, {s(sT0)} offen sc1
    s_sub_u32 {s(sRetry)}, {s(sRetry)}, 16
    s_cbranch_scc1 {lab_fail}
    s_waitcnt vmcnt(0)
    v_cmp_ne_u64 vcc, {s(sTag,2)}, v[96:97]
    s_nop 3
    s_ff1_i32_b32 {s(sRdy)}, vcc_lo
    s_min_u32 {s(sRdy)}, {s(sRdy)}, 33
    s_lshl_b32 {s(sRdy)}, {s(sRdy)}, 1
    s_cmp_eq_u32 {s(sRdy)}, 0
    s_cbranch_scc1 {lp}
    s_sub_u32 {s(sRdy)}, {s(sRdy)}, 1
    """)
    if not first:
        A(f"s_cmp_lt_u32 {s(sS)}, {s(sRdy)}")
        A(f"s_cbranch_scc0 {lp}")

def filler(A, slots, T):
    while slots > 0:
        A(f"v_mov_b32 {v(T)}, 0"); slots -= 1
        n = min(slots, 2)
        if n: A(f"s_nop {n-1}"); slots -= n

def step(A, par, st, tails, lab_next, lab_exit, lab_fail):
    T = QF
    stamp(A, 0)
    def cls_delay(de, dl, T):
        lo = min(de, dl)
        filler(A, lo, T)
        if de != dl:
            sk = A.uid("DE")
            A(f"s_cmp_ge_u32 {s(sH)}, 16" if de > dl else f"s_cmp_lt_u32 {s(sH)}, 16")
            A(f"s_cbranch_scc1 {sk}")
            filler(A, abs(de - dl), T)
            A.label(sk)
    cls_delay(DELAY_E, DELAY_L, T)
    stamp(A, 30)
    A(mem_load_s(0)); A(mem_load_s(1))
    filler(A, PERIOD, T)
    lp = A.uid("H2")
    A.label(lp)
    A(mem_load_s(0)); A(mem_load_s(1))
    A(f"s_sub_u32 {s(sRetry)}, {s(sRetry)}, 1")
    A(f"s_cbranch_scc1 {lab_fail}")
    filler(A, PERIOD - 10, T)
    A("s_waitcnt vmcnt(2) lgkmcnt(0)")
    stamp(A, 31)
    A(f"""
    v_max3_u32 {v(T)}, {v(M)}, {v(M+2)}, {v(M+4)}
    v_max_u32 {v(T)}, {v(T)}, {v(M+6)}
    v_cmp_eq_u32 vcc, -1, {v(T)}
    ds_write_b128 {v(XA)}, {v(M,4)} offset:{L_M}
    ds_write_b128 {v(XA)}, {v(M+4,4)} offset:{L_M+4096}
    s_cbranch_vccnz {lp}
    """)
    stamp(A, 1)
    def refill(b, i):
        f, hf = i >> 1, i & 1
        sl = 2*(b & 1)
        if b in (0, 1):
            return f"ds_read_b128 {v(ST+(sl+f)*8+hf*4,4)}, {v(vWL)} offset:{KLDS[b+4]*4096+f*2048+hf*1024}"
        kt = b - 4
        return f"ds_read_b128 {v(ST+kt*16+i*4,4)}, {v(vL16)} offset:{L_KX+par*8192+(kt*4+i)*1024}"
    def blk(b):
        sl = 2*(b & 1)
        kreg = (lambda t: ST+(sl+t)*8) if b in KLDS else (lambda t: WK+(KRES[b]*2+t)*8)
        return [smf_s(AK, M+4*b, kreg(0)), smf_s(AK+4, M+4*b, kreg(1)), smf_s(AQ, M+4*b, WQ+(b*2)*8), smf_s(AQ+4, M+4*b, WQ+(b*2+1)*8)]
    vq = [smf_s(AV+4*t, M+4*b, WV+(b*2+t)*8) for b in range(8) for t in range(2)]
    def vm(n=1):
        for _ in range(n):
            if vq: A(vq.pop(0))
    own = blk(0) + blk(1)
    for m_ in own[:NOWN]: A(m_)
    A("s_waitcnt lgkmcnt(0)")
    stamp(A, 32)
    A("s_barrier")
    stamp(A, 33)
    mr = [f"ds_read_b128 {v(M+4*b,4)}, {v(XA+(b>>1))} offset:{L_M+(b&1)*4096}" for b in range(2, 8)]
    rf = [refill(b, i) for b in (0, 1) for i in range(4)]
    A(mr[0]); A(mr[1])
    rest = own[NOWN:] + [vq.pop(0) for _ in range(NV0)]
    q_ = mr[2:]
    for m_ in rest:
        A(m_)
        for _ in range(2):
            if q_: A(q_.pop(0))
    assert not q_
    pf = prefetch_ops(1-par)
    if NOPF: pf = [p if not p.startswith("buffer") else "s_nop 0" for p in pf]
    pub = f"buffer_store_dwordx2 {v(PUB,2)}, {v(vRed)}, {s(WS,4)}, {s(sPub)} offen sc1"
    kvl, kvb = A.uid("KW"), A.uid("KB")
    def emit_kv():
        A.label(kvl)
        kv_poll(A, lab_fail)
        A(f"s_branch {kvb}")
    if KVWAIT:
        tails.append(emit_kv)
        A(f"s_cmp_lt_u32 {s(sS)}, {s(sRdy)}")
        A(f"s_cbranch_scc0 {kvl}")
        A.label(kvb)
    extra = {(2,0): [pf[0]], (2,1): [pf[1]], (3,1): [pf[2]], (4,0): [pf[3]], (5,0): [pf[4]], (6,0): [pub],
             (6,1): [pf[5], pf[6]], (6,2): [f"s_add_u32 {s(sPub)}, {s(sPub)}, 8192"],
             (7,0): ["s_nop 1"], (7,1): ["s_nop 1"], (7,2): ["s_nop 1"], (7,3): ["s_nop 1"]}
    nrf = 0
    for b in range(2, 8):
        bl = blk(b)
        if b == 2: stamp(A, 34)
        if b == 5: stamp(A, 35)
        if b < 4: A(f"s_waitcnt lgkmcnt({7-b+nrf})")
        elif b == 4: A("s_waitcnt lgkmcnt(4)")
        elif b == 5: A("s_waitcnt lgkmcnt(4)")
        for i, m_ in enumerate(bl):
            A(m_)
            if b in (2, 3):
                A(rf[nrf]); nrf += 1
            elif b in (4, 5):
                if i == 1: A(refill(b, 0))
                if i == 2: A(refill(b, 1)); A(refill(b, 2))
                if i == 3: A(refill(b, 3))
            for o in extra.get((b, i), []): A(o)
    stamp(A, 2)
    E = QF
    for acc, dst in ((AK, E+1), (AK+4, E+3), (AQ, E), (AQ+4, E+2)):
        A(f"v_add_f32 {v(acc)}, {v(acc)}, {v(acc+2)}")
        A(f"v_add_f32 {v(acc+1)}, {v(acc+1)}, {v(acc+3)}")
        A(f"v_cvt_pk_bf16_f32 {v(dst)}, {v(acc)}, {v(acc+1)}")
    A(f"ds_write2_b64 {v(vQKw)}, {v(E,2)}, {v(E+2,2)} offset1:64")
    stamp(A, 36)
    vm(NV1)
    A("s_waitcnt lgkmcnt(0)")
    A("s_barrier")
    stamp(A, 3)
    trs = [f"ds_read_b64_tr_b16 {v(QF+4*u+2*j4,2)}, {v(vTR)} offset:{u*1024+j4*512}" for u in range(4) for j4 in range(2)]
    A(trs[0]); A(trs[1])
    vm(); A(trs[2]); A(trs[3])
    vm(); A(trs[4]); A(trs[5])
    vm(); A(trs[6]); A(trs[7])
    vm(NV2 - 3)
    X0, X1, XM = 64, 68, 72
    t0, t1, t2, t3 = 76, 77, 78, 79
    ONE = 48
    LA = 40
    OA = 32
    wst = [f"ds_read_b128 {v(M+(tau*2+b)*8+hf*4,4)}, {v(vWL)} offset:{wo_lds(tau,b)+hf*1024}" for tau in (0, 1) for b in range(2) for hf in range(2)]
    for u in range(4):
        A(f"s_waitcnt lgkmcnt({6-2*u})" + (" vmcnt(5)" if u == 3 else ""))
        A(mf_s(X0, ST+u*4, QF+4*u, "0" if u == 0 else v(X0,4)))
        if u == 2: A(f"v_mov_b64 {v(ONE,2)}, {s(sOne,2)}"); A(f"v_mov_b64 {v(ONE+2,2)}, {s(sOne,2)}")
        if u == 3: A(f"v_mov_b32 {v(ONE+4)}, {s(sOne)}"); A(f"v_mov_b32 {v(ONE+5)}, 0")
        A(mf_s(X1, ST+16+u*4, QF+4*u, "0" if u == 0 else v(X1,4)))
    zs = [f"v_mov_b64 {v(r,2)}, 0" for r in (44, 46, 54, 56, 58, 60, 62)]
    zs2 = [f"v_mov_b64 {v(r,2)}, 0" for r in (32, 34, 36, 38, 40, 42, 48, 50, 52)]
    for u in range(4):
        A(mf_s(XM, QF+4*u, QF+4*u, "0" if u == 0 else v(XM,4)))
        A(wst[u])
        if u == 0: A(zs[0]); A(zs[1])
        if u == 1: A(zs[2]); A(zs[3])
        if u == 2:
            A(f"v_max3_f32 {v(t0)}, {v(X0)}, {v(X0+1)}, {v(X0+2)}")
            A(f"v_max3_f32 {v(t1)}, {v(X0+3)}, {v(X1)}, {v(X1+1)}")
        if u == 3:
            A(f"v_max3_f32 {v(t0)}, {v(t0)}, {v(X1+2)}, {v(X1+3)}")
            A(f"v_max_f32 {v(t2)}, {v(t0)}, {v(t1)}")
    stamp(A, 4)
    vm(); A("s_nop 1"); A(zs[4])
    A("s_nop 0")
    A(f"v_max3_f32 {v(t0)}, {v(t2)}, {v(XM+2)}, {v(XM+3)}")
    A(f"v_max3_f32 {v(t1)}, {v(t2)}, {v(XM+2)}, {v(XM+3)}")
    if vq: vm(); A("s_nop 0")
    else: A(zs[5]); A(zs[6]); zs[5] = zs[6] = None
    A(f"v_permlane16_swap_b32 {v(t0)}, {v(t1)}")
    A(f"v_max_f32 {v(t2)}, {v(t0)}, {v(t1)}")
    A(f"v_max_f32 {v(t3)}, {v(t0)}, {v(t1)}")
    if vq: vm(); A("s_nop 0")
    elif zs[5]: A(zs[5]); A(zs[6]); zs[5] = zs[6] = None
    else: A("s_nop 1")
    A(f"v_permlane32_swap_b32 {v(t2)}, {v(t3)}")
    A(f"v_max_f32 {v(t0)}, {v(t2)}, {v(t3)}")
    vm(16)
    A(f"v_mul_f32 {v(t0)}, {s(sC)}, {v(t0)}")
    for r in (X0, X0+2, X1, X1+2, XM+2):
        A(f"v_pk_fma_f32 {v(r,2)}, {v(r,2)}, {s(sC,2)}, {v(t0,2)} op_sel_hi:[1,1,0] neg_lo:[0,0,1] neg_hi:[0,0,1]")
    for r in range(X0, X0+8): A(f"v_exp_f32 {v(r)}, {v(r)}")
    stamp(A, 5)
    P = QF
    for r in range(4): A(f"v_cvt_pk_bf16_f32 {v(P+r)}, {v(X0+2*r)}, {v(X0+2*r+1)}")
    A(f"v_exp_f32 {v(XM+2)}, {v(XM+2)}")
    A(wst[4])
    A(mf_s(LA, ONE, P, "0"))
    A(wst[5])
    A(f"v_exp_f32 {v(XM+3)}, {v(XM+3)}")
    A(mf_s(OA, VXR[par], P, "0"))
    A(wst[6])
    A(f"v_cvt_pk_bf16_f32 {v(P+4)}, {v(XM+2)}, {v(XM+3)}")
    A(f"v_cvt_pk_bf16_f32 {v(P+5)}, {v(XM+2)}, {v(XM+3)}")
    A(mf_s(OA+4, VXR[par]+4, P, "0"))
    A(wst[7])
    A(f"v_cvt_pk_bf16_f32 {v(AV)}, {v(AV)}, {v(AV+1)}")
    A(f"v_cvt_pk_bf16_f32 {v(AV+1)}, {v(AV+2)}, {v(AV+3)}")
    A(f"v_mfma_f32_16x16x16_bf16 {v(LA,4)}, {v(ONE+4,2)}, {v(P+4,2)}, {v(LA,4)}")
    A(f"s_add_u32 {s(sS)}, {s(sS)}, 1")
    A(f"v_cvt_pk_bf16_f32 {v(AV+2)}, {v(AV+4)}, {v(AV+5)}")
    A(f"v_cvt_pk_bf16_f32 {v(AV+3)}, {v(AV+6)}, {v(AV+7)}")
    A(f"v_mfma_f32_16x16x16_bf16 {v(OA,4)}, {v(AV,2)}, {v(P+4,2)}, {v(OA,4)}")
    A("s_nop 0")
    if zs[5]: A(zs[5]); A(zs[6])
    else: A("s_nop 1")
    A(f"v_mfma_f32_16x16x16_bf16 {v(OA+4,4)}, {v(AV+2,2)}, {v(P+4,2)}, {v(OA+4,4)}")
    A("s_nop 0")
    A(f"v_rcp_f32 {v(t0)}, {v(LA)}")
    A(zs2[6]); A(zs2[7])
    for r in range(0, 4, 2): A(f"v_pk_mul_f32 {v(OA+r,2)}, {v(OA+r,2)}, {v(t0,2)} op_sel_hi:[1,0]")
    for r in range(2): A(f"v_cvt_pk_bf16_f32 {v(P+r)}, {v(OA+2*r)}, {v(OA+2*r+1)}")
    for r in range(4, 8, 2): A(f"v_pk_mul_f32 {v(OA+r,2)}, {v(OA+r,2)}, {v(t0,2)} op_sel_hi:[1,0]")
    for r in range(2, 4): A(f"v_cvt_pk_bf16_f32 {v(P+r)}, {v(OA+2*r)}, {v(OA+2*r+1)}")
    A(f"ds_write_b128 {v(vOw)}, {v(P,4)}")
    stamp(A, 6)
    for z in zs2[:5]:
        A(z); A("s_nop 1")
    A("s_waitcnt lgkmcnt(0)")
    A("s_barrier")
    stamp(A, 7)
    OF = QF + 4
    A(f"ds_read_b128 {v(OF,4)}, {v(vL16)} offset:{L_O}")
    A(f"ds_read_b128 {v(OF+4,4)}, {v(vL16)} offset:{L_O+1024}")
    MK = t1
    A(zs2[5]); A(f"v_and_b32 {v(MK)}, 0x30, {v(vL16)}"); A(zs2[8]); A("s_nop 0")
    A(f"v_min_u32 {v(MK)}, 1, {v(MK)}"); A("s_nop 0")
    A(f"v_xor_b32 {v(MK)}, 1, {v(MK)}" if par else f"v_or_b32 {v(MK)}, -2, {v(MK)}")
    A("s_nop 1")
    A("s_waitcnt lgkmcnt(1)")
    G1, G2 = 68, 72
    def wreg(tau, b):
        if tau < 2: return M + (tau*2+b)*8
        if tau >= 6: return M + ((tau-6)*2+b)*8
        return WO + ((tau-2)*2+b)*8
    wq = [smf_s(ST+4*tau, OF+4*b, wreg(tau, b)) for tau in range(8) for b in range(2)]
    wre = [f"ds_read_b128 {v(M+((tau-6)*2+b)*8+hf*4,4)}, {v(vWL)} offset:{wo_lds(tau,b)+hf*1024}" for tau in (6, 7) for b in range(2) for hf in range(2)]
    def epi(tau):
        x = ST+4*tau
        o = [f"v_add_f32 {v(x)}, {v(x)}, {v(x+2)}", f"v_add_f32 {v(x+1)}, {v(x+1)}, {v(x+3)}", f"v_cvt_pk_bf16_f32 {v(x)}, {v(x)}, {v(x+1)}"]
        o.append(("v_or_b32" if par else "v_and_b32") + f" {v(x)}, {v(MK)}, {v(x)}")
        o.append(f"buffer_store_dword {v(x)}, {v(vPart)}, {s(R_P0 if tau < 4 else R_P1,4)}, 0 offen offset:{64*(tau&3)} {st}")
        return o
    seq = []; pend = []; done_at = {}; nxt = 0
    def states(): return sum((int(x.split()[1]) + 1) if x.startswith("s_nop") else 1 for x in seq)
    for i in range(16):
        if i == 1 or i == 12: seq.append("s_waitcnt lgkmcnt(0)")
        seq.append(wq[i])
        if i & 1: done_at[i >> 1] = states()
        nn = 0
        if pend and pend[0].startswith("buffer"):
            seq.append(pend.pop(0)); nn += 1
        while nn < 2 and wre and i >= 1 and len(wre) > 8 - 2*i:
            seq.append(wre.pop(0)); nn += 1
        if nn < 2 and i > 0: seq.append(f"s_nop {1-nn}")
        nv = 0
        while nv < 2:
            if not pend and nxt in done_at and states() - done_at[nxt] >= 8:
                pend = epi(nxt); nxt += 1
            if pend and not pend[0].startswith("buffer"):
                seq.append(pend.pop(0)); nv += 1
            else: break
    while nxt < 8 or pend:
        if not pend:
            d = states() - done_at[nxt]
            if d < 8: seq.append(f"s_nop {7-d}")
            pend = epi(nxt); nxt += 1
        seq.append(pend.pop(0))
    stamp(A, 20)
    for n_, x in enumerate(seq):
        A(x)
        if x == wq[7]: stamp(A, 21)
    stamp(A, 8)
    skip = A.uid("NR")
    A(f"s_cmp_lg_u32 {s(sW)}, 0")
    A(f"s_cbranch_scc1 {skip}")
    SEL = QF
    RA = QF + 8
    TC = QF + 14
    NEG = PUB
    rot = f"""
    s_mov_b32 {s(sT0)}, {s(sPoi)}
    s_mov_b32 {s(sPoi)}, {s(sCur)}
    s_mov_b32 {s(sCur)}, {s(sNxt)}
    s_mov_b32 {s(sNxt)}, {s(sT0)}
    """
    A(f"v_mov_b64 {v(NEG,2)}, -1")
    A(f"ds_read_b128 {v(SEL,4)}, {v(vL16)} offset:{L_SEL}")
    A(f"buffer_store_dwordx2 {v(NEG,2)}, {v(vRed)}, {s(R_ML,4)}, {s(sPoi)} offen {st}")
    ps = pre_step_ops()
    for o in ps[:RPRE]: A(o)
    cls_delay(RDELAY_E, RDELAY_L, TC)
    stamp(A, 22)
    for j in range(8): A(inb_load_s(j))
    stamp(A, 23)
    for o in ps[RPRE:]: A(o)
    A(rot)
    A("s_waitcnt lgkmcnt(8)")
    lp = A.uid("RL"); ok = A.uid("RK")
    def proc(base):
        for j in range(8):
            A(f"s_waitcnt vmcnt({base+7-j})")
            if j == 0: stamp(A, 24)
            if j == 7: stamp(A, 25)
            if j == 1: A((f"v_and_b32" if par else "v_or_b32") + f" {v(TC)}, {v(M)}, {v(M+4)}")
            elif j in (3, 5): A(f"v_bitop3_b32 {v(TC)}, {v(TC)}, {v(M+4*j-4)}, {v(M+4*j)} bitop3:{'0x80' if par else '0xfe'}")
            elif j == 6: A((f"v_and_b32" if par else "v_or_b32") + f" {v(TC)}, {v(TC)}, {v(M+4*j)}")
            A(mf_s(RA, M+4*j, SEL, "0" if j == 0 else v(RA,4)))
        A(f"v_bitop3_b32 {v(TC)}, {v(TC)}, {v(M+28)}, 1 bitop3:{'0x80' if par else '0xa8'}")
        A(f"v_cmp_ne_u32 vcc, {par}, {v(TC)}")
    proc(0)
    A(f"s_cbranch_vccnz {lp}")
    A.label(ok)
    def emit_rl():
        A.label(lp)
        for j in range(8): A(inb_load_s(j))
        A(f"s_sub_u32 {s(sRetry)}, {s(sRetry)}, 0x1000")
        A(f"s_cbranch_scc1 {lab_fail}")
        proc(0)
        A(f"s_cbranch_vccnz {lp}")
        A(f"s_branch {ok}")
    tails.append(emit_rl)
    stamp(A, 9)
    A(f"s_cmp_eq_u32 {s(sS)}, 63")
    A("s_nop 3")
    A(f"v_cvt_pk_bf16_f32 {v(PUB)}, {v(RA)}, {v(RA+1)}")
    A(f"v_cvt_pk_bf16_f32 {v(PUB+1)}, {v(RA+2)}, {v(RA+3)}")
    A(f"v_min_u32 {v(PUB)}, -2, {v(PUB)}")
    A(f"buffer_store_dwordx2 {v(PUB,2)}, {v(vRed)}, {s(R_ML,4)}, {s(sCur)} offen {st}")
    join = A.uid("JN")
    def emit_nr():
        A.label(skip)
        pre_step(A)
        A(rot)
        A(f"s_cmp_eq_u32 {s(sS)}, 63")
        A("s_waitcnt vmcnt(0)")
        A(f"s_branch {join}")
    tails.append(emit_nr)
    A.label(join)
    A(f"s_cbranch_scc1 {lab_exit}")
    stamp(A, 10)
    A("s_barrier")
    stamp(A, 11)
    stamp_dump(A)
    if lab_next: A(f"s_branch {lab_next}")

def chain_loop(A, st, lab_exit, lab_fail):
    tails = []
    top = A.uid("STEP")
    A.label(top)
    step(A, 0, st, tails, None, lab_exit, lab_fail)
    step(A, 1, st, tails, top, lab_exit, lab_fail)
    for t in tails: t()

def chain_exit(A):
    A(f"buffer_store_dwordx2 {v(PUB,2)}, {v(vRed)}, {s(WS,4)}, {s(sPub)} offen sc1")

def chain_prologue2(A):
    A(f"""
    s_lshl_b32 {s(sT0)}, {s(sH)}, 13
    s_lshl_b32 {s(sT1)}, {s(sW)}, 11
    s_add_u32 {s(sT0)}, {s(sT0)}, {s(sT1)}
    s_add_u32 {s(sKX)}, {s(sT0)}, {KX}
    s_add_u32 {s(sVX)}, {s(sT0)}, {VX}
    s_add_u32 {s(sM0a)}, {s(sT1)}, {L_KX}
    s_add_u32 {s(sM0b)}, {s(sT1)}, {L_KX+8192}
    s_mov_b32 {s(sPub)}, {MPUB}
    s_lshl_b32 {s(sW10)}, {s(sW)}, 10
    s_mov_b32 {s(sS)}, 0
    s_mov_b32 {s(sC)}, 0x3e0293ee     ; log2(e)/sqrt(128)
    s_mov_b32 {s(sC+1)}, 0x3e0293ee
    s_mov_b32 {s(sOne)}, 0x3f803f80
    s_mov_b32 {s(sOne+1)}, 0x3f803f80
    """)
```

```python
import sys
from asmlib import *
from layout import *
import chain as C

def header(lds):
    ref = open(f"cdna_kernels/{NAME}.s.ref").read().split("\n")
    hdr = [l for l in ref if l.startswith(";") and "@launch" not in l and "Override" not in l and "grid=ceil" not in l]
    return "\n".join(hdr) + f"\n; @launch grid=(256,1,1) block=(256,1,1) lds={lds}\n" + f""".amdgcn_target "amdgcn-amd-amdhsa--gfx950"
.text
.globl {NAME}_kernel
.p2align 8
.type {NAME}_kernel,@function
{NAME}_kernel:
"""
def footer():
    return f""".section .rodata,"a"
.p2align 6
.amdhsa_kernel {NAME}_kernel
  .amdhsa_next_free_vgpr 512
  .amdhsa_next_free_sgpr 102
  .amdhsa_accum_offset 256
  .amdhsa_group_segment_fixed_size 0
  .amdhsa_kernarg_size 112
  .amdhsa_user_sgpr_count 2
  .amdhsa_user_sgpr_kernarg_segment_ptr 1
  .amdhsa_system_sgpr_workgroup_id_x 1
.end_amdhsa_kernel
"""

def get_tag(A, lab_fail):
    t = C.sTag
    sk = A.uid("TG")
    A(f"""
    s_load_dwordx2 s[16:17], s[0:1], 96
    s_mov_b32 s18, 256
    s_mov_b32 s19, 0x20000
    s_memrealtime {s(t,2)}
    v_mov_b32 v22, 0
    s_waitcnt lgkmcnt(0)
    s_or_b32 {s(C.sT0)}, s2, {s(C.sW)}
    s_cmp_lg_u32 {s(C.sT0)}, 0
    s_cbranch_scc1 {sk}
    s_and_b32 {s(t+1)}, {s(t+1)}, 0x0fffffff
    s_or_b32 {s(t+1)}, {s(t+1)}, 0x08000000
    v_mov_b32 v20, {s(t)}
    v_mov_b32 v21, {s(t+1)}
    buffer_store_dwordx2 v[20:21], v22, s[16:19], 0 offen sc1
    """)
    A.label(sk)
    lp = A.uid("TP")
    A(f"s_mov_b32 {s(C.sRetry)}, 1000000")
    A.label(lp)
    A(f"""
    buffer_load_dwordx2 v[20:21], v22, s[16:19], 0 offen sc1
    s_sub_u32 {s(C.sRetry)}, {s(C.sRetry)}, 1
    s_cbranch_scc1 {lab_fail}
    s_waitcnt vmcnt(0)
    v_readfirstlane_b32 {s(t)}, v20
    v_readfirstlane_b32 {s(t+1)}, v21
    s_cmp_eq_u32 {s(t+1)}, 0
    s_cbranch_scc1 {lp}
    """)

def chain_sync(A, lab_fail):
    t = C.sTag
    A(f"""
    s_waitcnt vmcnt(0)
    s_barrier
    s_getreg_b32 {s(C.sT0)}, hwreg(HW_REG_XCC_ID, 0, 4)
    s_lshl_b32 {s(C.sT0)}, {s(C.sT0)}, 28
    s_or_b32 {s(C.sT0)}, {s(C.sT0)}, {s(t+1)}
    v_mov_b32 v20, {s(t)}
    v_mov_b32 v21, {s(C.sT0)}
    s_lshl_b32 {s(C.sT1)}, {s(C.sH)}, 7
    s_add_u32 {s(C.sT1)}, {s(C.sT1)}, {F_CH}
    v_mov_b32 v22, 0
    buffer_store_dwordx2 v[20:21], v22, {s(C.WS,4)}, {s(C.sT1)} offen sc1
    """)
def chain_sync_wait(A, lab_fail):
    t = C.sTag
    lp = A.uid("SP")
    A(f"""
    s_getreg_b32 {s(C.sT0)}, hwreg(HW_REG_XCC_ID, 0, 4)
    v_and_b32 v22, 31, v0
    v_lshlrev_b32 v22, 7, v22
    s_mov_b32 {s(C.sT1)}, {F_CH}
    s_mov_b32 {s(C.sRetry)}, 1000000
    """)
    A.label(lp)
    A(f"""
    buffer_load_dwordx2 v[20:21], v22, {s(C.WS,4)}, {s(C.sT1)} offen sc1
    s_sub_u32 {s(C.sRetry)}, {s(C.sRetry)}, 1
    s_cbranch_scc1 {lab_fail}
    s_waitcnt vmcnt(0)
    v_lshrrev_b32 v23, 28, v21
    v_and_b32 v21, 0x0fffffff, v21
    v_cmp_ne_u64 vcc, {s(t,2)}, v[20:21]
    s_cbranch_vccnz {lp}
    v_cmp_ne_u32 vcc, {s(C.sT0)}, v23
    """)

def build(force_slow=False):
    A = Asm()
    A(f"""
    s_cmp_ge_u32 s2, 256
    s_cbranch_scc1 L_END
    s_and_b32 s3, s2, 7
    s_cmp_lg_u32 s3, 0
    s_cbranch_scc1 L_END
    s_lshr_b32 {s(C.sH)}, s2, 3
    v_lshrrev_b32 v1, 6, v0
    s_memrealtime {s(C.sTime,2)}
    v_readfirstlane_b32 {s(C.sW)}, v1
    """)
    C.srd(A, C.WS, 104, WS_SIZE)
    get_tag(A, "L_FAIL")
    C.chain_setup(A)
    C.chain_init_comm(A)
    chain_sync(A, "L_FAIL")
    A("s_waitcnt vmcnt(0)")
    C.chain_load_weights(A)
    C.chain_prologue2(A)
    C.prefetch_kv(A, 0)
    chain_sync_wait(A, "L_FAIL")
    A(f"s_mov_b32 {s(C.sRetry)}, 0xffffff")
    C.pre_step(A)
    A(f"s_memrealtime {s(C.sTime+2,2)}")
    A(f"s_memtime {s(C.sTime+4,2)}")
    A("s_waitcnt vmcnt(0) lgkmcnt(0)")
    A("s_barrier")
    if force_slow:
        A("s_branch L_SLOW")
    else:
        A("s_cbranch_vccnz L_SLOW")
    C.chain_loop(A, "", "L_EXIT", "L_FAIL")
    A.label("L_SLOW")
    C.chain_loop(A, "sc1", "L_EXIT", "L_FAIL")
    A.label("L_EXIT")
    C.chain_exit(A)
    A("s_waitcnt vmcnt(0)")
    A(f"""
    s_memtime {s(C.sTime+6,2)}
    s_waitcnt lgkmcnt(0)
    s_sub_u32 {s(C.sT0)}, {s(C.sTime+6)}, {s(C.sTime+4)}
    s_sub_u32 {s(C.sT1)}, {s(C.sTime+2)}, {s(C.sTime)}
    v_mov_b32 v20, {s(C.sT0)}
    v_mov_b32 v21, {s(C.sT1)}
    v_mov_b32 v22, {s(C.sRetry)}
    v_mov_b32 v23, 0
    s_lshl_b32 {s(C.sT0)}, {s(C.sH)}, 2
    s_add_u32 {s(C.sT0)}, {s(C.sT0)}, {s(C.sW)}
    s_lshl_b32 {s(C.sT0)}, {s(C.sT0)}, 4
    s_add_u32 {s(C.sT0)}, {s(C.sT0)}, {DIAG}
    buffer_store_dwordx4 v[20:23], v23, {s(C.WS,4)}, {s(C.sT0)} offen
    s_branch L_END
    """)
    A.label("L_FAIL")
    A(f"""
    v_mov_b32 v20, 0xdead
    v_mov_b32 v21, 16
    buffer_store_dword v20, v21, s[16:19], 0 offen
    """)
    A.label("L_END")
    A("s_waitcnt vmcnt(0)")
    A("s_endpgm")
    check_hazards(A.lines)
    return header(C.LDS_CHAIN) + A.text() + footer()

if __name__ == "__main__":
    C.KVWAIT = False
    nm = sys.argv[1] if len(sys.argv) > 1 else "chain_test"
    slow = False
    for kv in sys.argv[2:]:
        k_, v_ = kv.split("=")
        if k_ == "SLOW": slow = bool(int(v_))
        else: setattr(C, k_, int(v_))
    open(f"gen/{nm}.s", "w").write(build(slow))
```

```python
WS_SIZE = 268435456
XN   = 0x0000000
KX   = 0x0200000
VX   = 0x1200000
QX   = 0x2200000
OB   = 0x3200000
HB   = 0x4200000
HROW = 44*1024
MPUB = 0x4800000
RING = 0x5800000
SLOT = 0x80000
MEMO = 0x40000
FLAGS = 0x5A00000
F_CH = FLAGS
F_LN = FLAGS + 0x1000
F_KV = FLAGS + 0x2000
F_Q  = FLAGS + 0x4000
F_H  = FLAGS + 0x6000
F_O  = FLAGS + 0x10000
DIAG = 0x5B00000
NAME = "recurrent_scan__memory_aug_recurrent_mem_tr__glu_gated_reglu__prompt"
```

```python
from asmlib import *
from layout import *
import chain as C
from chain import WS, SA, sW, sTag, sRetry, sT0, sT1, sT2, sT3, srd

sWI = 20
sHd = 22
sJ = 23
sStep = 24
sCh = 25
sOut = 26
sFl = 27
sPrev = 28
sLim = 29
SB = 12
sX0, sX1, sX2, sX3, sX4, sX5 = 40, 41, 42, 43, 44, 45
sCc = 46
sOne = 48
SX = 52
SO = 56
FAIL = "L_FAIL"

vLane, vL16, vZero = 250, 251, 252
vTagLo = 254

def common_setup(A):
    A(f"""
    v_and_b32 {v(vLane)}, 63, v0
    v_lshlrev_b32 {v(vL16)}, 4, {v(vLane)}
    v_mov_b32 {v(vZero)}, 0
    v_mov_b32 {v(vTagLo)}, {s(sTag)}
    v_mov_b32 {v(vTagLo+1)}, {s(sTag+1)}
    s_mov_b32 {s(sRetry)}, 0x400000
    """)

def set_flag(A, soff):
    A(f"buffer_store_dwordx2 {v(vTagLo,2)}, {v(vZero)}, {s(WS,4)}, {soff} offen sc1")

def wait_flags(A, voff, soff, tmp, sleep=4, imm=0):
    lp = A.uid("WF"); ok = A.uid("WK")
    A.label(lp)
    A(f"""
    buffer_load_dwordx2 {v(tmp,2)}, {v(voff)}, {s(WS,4)}, {soff} offen offset:{imm} sc1
    s_waitcnt vmcnt(0)
    v_cmp_ne_u64 vcc, {s(sTag,2)}, {v(tmp,2)}
    s_cbranch_vccz {ok}
    s_sub_u32 {s(sRetry)}, {s(sRetry)}, 1
    s_cbranch_scc1 {FAIL}
    s_sleep {sleep}
    s_branch {lp}
    """)
    A.label(ok)

def xsum(A, x, t):
    A(f"""
    v_mov_b32 {v(t)}, {v(x)}
    s_nop 1
    v_permlane16_swap_b32 {v(x)}, {v(t)}
    v_add_f32 {v(x)}, {v(x)}, {v(t)}
    v_mov_b32 {v(t)}, {v(x)}
    s_nop 1
    v_permlane32_swap_b32 {v(x)}, {v(t)}
    v_add_f32 {v(x)}, {v(x)}, {v(t)}
    """)
def xmax(A, x, t):
    A(f"""
    v_mov_b32 {v(t)}, {v(x)}
    s_nop 1
    v_permlane16_swap_b32 {v(x)}, {v(t)}
    v_max_f32 {v(x)}, {v(x)}, {v(t)}
    v_mov_b32 {v(t)}, {v(x)}
    s_nop 1
    v_permlane32_swap_b32 {v(x)}, {v(t)}
    v_max_f32 {v(x)}, {v(x)}, {v(t)}
    """)
def rbf(A, x):
    A(f"v_cvt_pk_bf16_f32 {v(x)}, {v(x)}, {v(x)}")
    A(f"v_and_b32 {v(x)}, 0xffff0000, {v(x)}")

def layernorm(A, ntiles=2):
    srd(A, SX, 0, 2048*512*2)
    A(f"""
    v_and_b32 v1, 15, {v(vLane)}
    v_lshrrev_b32 v2, 4, {v(vLane)}
    v_lshlrev_b32 v3, 10, v1
    v_lshl_add_u32 v3, v2, 4, v3          ; tok*1024 + g*16
    s_lshl_b32 {s(sX1)}, {s(sX0)}, 14
    s_lshl_b32 {s(sX2)}, {s(sW)}, 8
    s_add_u32 {s(sX2)}, {s(sX2)}, {s(sX1)}
    s_lshl_b32 {s(sX3)}, {s(sW)}, 7
    v_lshlrev_b32 v4, 3, v1               ; tok*8
    v_add_u32 v5, {s(sX3)}, v4            ; + w*128
    """)
    for t in range(ntiles):
        if t: A(f"s_add_u32 {s(sX2)}, {s(sX2)}, 16384")
        for i in range(4):
            A(f"buffer_load_dwordx4 {v(16+t*16+i*4,4)}, v3, {s(SX,4)}, {s(sX2)} offen offset:{i*64}")
    F = 64
    for t in range(ntiles):
        A(f"s_waitcnt vmcnt({4*(ntiles-1-t)})")
        f = F + t*32
        for r in range(16):
            A(f"v_lshlrev_b32 {v(f+2*r)}, 16, {v(16+t*16+r)}")
            A(f"v_and_b32 {v(f+2*r+1)}, 0xffff0000, {v(16+t*16+r)}")
        A(f"v_add_f32 v8, {v(f)}, {v(f+1)}")
        A(f"v_add_f32 v9, {v(f+2)}, {v(f+3)}")
        for r in range(4, 32, 2):
            A(f"v_add_f32 v8, v8, {v(f+r)}")
            A(f"v_add_f32 v9, v9, {v(f+r+1)}")
        A("v_add_f32 v8, v8, v9")
        xsum(A, 8, 10)
        A("v_mul_f32 v8, 0x3c000000, v8      ; /128")
        A("v_mov_b32 v9, 0")
        A("v_mov_b32 v11, 0")
        for r in range(0, 32, 2):
            A(f"v_sub_f32 v10, {v(f+r)}, v8")
            A(f"v_sub_f32 v12, {v(f+r+1)}, v8")
            A(f"v_fmac_f32 v9, v10, v10")
            A(f"v_fmac_f32 v11, v12, v12")
        A("v_add_f32 v9, v9, v11")
        xsum(A, 9, 10)
        A(f"ds_write_b64 v5, v[8:9] offset:{t*512}")
    A("s_waitcnt lgkmcnt(0)")
    A("s_barrier")
    A(f"""
    s_lshl_b32 {s(sX2)}, {s(sW)}, 12
    s_add_u32 {s(sX2)}, {s(sX2)}, {s(sX1)}
    """)
    for t in range(ntiles):
        f = F + t*32
        for w_ in range(4): A(f"ds_read_b64 {v(16+2*w_,2)}, v4 offset:{t*512+w_*128}")
        A(f"""
        s_waitcnt lgkmcnt(0)
        v_add_f32 v8, v16, v18
        v_add_f32 v9, v20, v22
        v_add_f32 v8, v8, v9
        v_mul_f32 v8, 0.25, v8
        """.replace("0.25", "0x3e800000"))
        A("""
        v_add_f32 v9, v17, v19
        v_add_f32 v10, v21, v23
        v_add_f32 v9, v9, v10
        v_sub_f32 v16, v16, v8
        v_sub_f32 v18, v18, v8
        v_sub_f32 v20, v20, v8
        v_sub_f32 v22, v22, v8
        v_mul_f32 v10, v16, v16
        v_fmac_f32 v10, v18, v18
        v_fmac_f32 v10, v20, v20
        v_fmac_f32 v10, v22, v22
        v_mul_f32 v10, 0x43000000, v10
        v_add_f32 v9, v9, v10
        v_mul_f32 v9, 0x3b000000, v9
        """)
        rbf(A, 8); rbf(A, 9)
        A("v_add_f32 v9, 0x3727c5ac, v9")
        rbf(A, 9)
        A("v_sqrt_f32 v9, v9")
        A("s_nop 0")
        rbf(A, 9)
        A("v_rcp_f32 v9, v9")
        for r in range(16):
            a_, b_ = f+2*r, f+2*r+1
            A(f"v_sub_f32 {v(a_)}, {v(a_)}, v8")
            A(f"v_sub_f32 {v(b_)}, {v(b_)}, v8")
            A(f"v_cvt_pk_bf16_f32 v10, {v(a_)}, {v(b_)}")
            A(f"v_lshlrev_b32 {v(a_)}, 16, v10")
            A(f"v_and_b32 {v(b_)}, 0xffff0000, v10")
            A(f"v_mul_f32 {v(a_)}, {v(a_)}, v9")
            A(f"v_mul_f32 {v(b_)}, {v(b_)}, v9")
            A(f"v_cvt_pk_bf16_f32 {v(32+t*16+r)}, {v(a_)}, {v(b_)}")
        if t: A(f"s_add_u32 {s(sX2)}, {s(sX2)}, 16384")
        for i in range(4):
            A(f"buffer_store_dwordx4 {v(32+t*16+i*4,4)}, {v(vL16)}, {s(WS,4)}, {s(sX2)} offen offset:{i*1024} sc1")
    A("s_waitcnt vmcnt(0)")
    A("s_barrier")
    A(f"s_lshl_b32 {s(sX2)}, {s(sX0)}, 3")
    A(f"s_add_u32 {s(sX2)}, {s(sX2)}, {F_LN}")
    for t in range(ntiles):
        A(f"buffer_store_dwordx2 {v(vTagLo,2)}, {v(vZero)}, {s(WS,4)}, {s(sX2)} offen offset:{8*t} sc1")

def load_w(A, blocks, lds_base, nslots, vD, vT):
    n = len(blocks)
    def issue(k):
        sr, sb, off, stride, _ = blocks[k]
        slot = k % nslots
        for i in range(4):
            A(f"s_add_u32 m0, {s(lds_base)}, {slot*4096 + i*1024}")
            A(f"s_add_u32 {s(sT3)}, {s(sb)}, {off + 16*i*stride}")
            A(f"buffer_load_dwordx4 {v(vD[stride])}, {s(sr,4)}, {s(sT3)} offen lds")
    for k in range(min(nslots, n)): issue(k)
    for k in range(n):
        newer = min(nslots - 1, n - 1 - k)
        A(f"s_waitcnt vmcnt({4*newer})")
        slot = k % nslots
        dst = blocks[k][4]
        for t in range(2):
            for uu in range(2):
                if dst[t][uu] is None: continue
                for j4 in range(2):
                    A(f"ds_read_b64_tr_b16 {R(dst[t][uu]+2*j4,2)}, {v(vT)} offset:{slot*4096 + uu*2048 + j4*256 + 8*t}")
        A("s_waitcnt lgkmcnt(0)")
        if k + nslots < n: issue(k + nslots)

def w_addrs(A, strides, lds_base):
    A(f"""
    v_lshrrev_b32 v1, 2, {v(vLane)}
    v_and_b32 v2, 3, {v(vLane)}
    v_lshlrev_b32 v2, 4, v2                ; chunk*16
    """)
    vD = {}
    for i, st in enumerate(strides):
        A(f"s_mov_b32 {s(sT3)}, {st}")
        A(f"v_mul_lo_u32 {v(3+i)}, v1, {s(sT3)}")
        A(f"v_add_u32 {v(3+i)}, {v(3+i)}, v2")
        vD[st] = 3 + i
    A(f"""
    v_lshrrev_b32 v6, 4, {v(vLane)}
    v_lshlrev_b32 v6, 3, v6
    v_and_b32 v1, 3, v1
    v_add_u32 v6, v6, v1
    v_lshlrev_b32 v6, 6, v6
    v_add_u32 v6, v6, v2
    v_add_u32 v6, {s(lds_base)}, v6
    """)
    return vD, 6

ACC = 0
XF = 64
PK = 96

def gemm_phase(A, kind):
    top = A.uid("GL");
    def dma(par, u):
        return [f"s_add_u32 m0, {s(sX4)}, {par*65536 + u*1024}",
                f"s_add_u32 {s(sT3)}, {s(sX5)}, {u*1024}",
                f"buffer_load_dwordx4 {v(vL16)}, {s(WS,4)}, {s(sT3)} offen sc1 lds"]
    nst = 4 if kind == 'F' else 8
    def body(par):
        done = A.uid("GD")
        A(f"s_waitcnt vmcnt({nst})")
        A("s_barrier")
        A(f"""
        s_add_u32 {s(sX0)}, {s(sCh)}, {s(sStep)}
        s_min_u32 {s(sX1)}, {s(sX0)}, 31
        s_lshl_b32 {s(sX5)}, {s(sX1)}, 16
        s_add_u32 {s(sX5)}, {s(sX5)}, {s(sX4)}
        """)
        sk = A.uid("GF")
        A(f"s_cmp_lt_i32 {s(sX3)}, 0")
        A(f"s_cbranch_scc1 {sk}")
        set_flag(A, s(sX3))
        A.label(sk)
        A(f"s_mov_b32 {s(sX3)}, {s(sPrev)}")
        vb = XF + 32 + 32
        def rd(u, buf):
            return [f"ds_read_b128 {v(XF+buf*16+tau*4,4)}, {v(vb+par)} offset:{tau*16384 + u*1024}" for tau in range(4)]
        for o in rd(0, 0): A(o)
        for u in range(16):
            buf = u & 1
            nx = rd(u+1, buf ^ 1) if u < 15 else []
            dm = dma(par ^ 1, u)
            A(f"s_waitcnt lgkmcnt(0)")
            k = 0
            for t in range(4):
                for tau in range(4):
                    d = ACC + (t*4+tau)*4
                    wreg = a((t*16+u)*4, 4); xreg = v(XF+buf*16+tau*4, 4)
                    c = "0" if u == 0 else v(d, 4)
                    if kind == 'N': A(f"v_mfma_f32_16x16x32_bf16 {v(d,4)}, {xreg}, {wreg}, {c}")
                    else: A(f"v_mfma_f32_16x16x32_bf16 {v(d,4)}, {wreg}, {xreg}, {c}")
                    if k < len(nx): A(nx[k])
                    if k == 6: A(dm[0]); A(dm[1])
                    if k == 7: A(dm[2])
                    k += 1
        A("s_nop 7")
        def pk(dst, r0, r1):
            A(f"v_cvt_pk_bf16_f32 {v(dst)}, {v(r0)}, {v(r0+1)}")
            A(f"v_cvt_pk_bf16_f32 {v(dst+1)}, {v(r0+2)}, {v(r0+3)}")
            A(f"v_cvt_pk_bf16_f32 {v(dst+2)}, {v(r1)}, {v(r1+1)}")
            A(f"v_cvt_pk_bf16_f32 {v(dst+3)}, {v(r1+2)}, {v(r1+3)}")
        acc = lambda t, tau: ACC + (t*4+tau)*4
        if kind == 'F':
            A(f"s_mul_i32 {s(sX1)}, {s(sCh)}, {4*HROW}")
        else:
            A(f"s_lshl_b32 {s(sX1)}, {s(sCh)}, 19")
        A(f"s_add_u32 {s(sX1)}, {s(sX1)}, {s(sOut)}")
        if kind == 'T':
            for tau in range(4):
                A(f"s_add_u32 {s(sX2)}, {s(sX1)}, {(tau>>1)*262144 + (tau&1)*4096}")
                for up in range(2):
                    p = PK + ((tau*2+up) % 8)*4
                    pk(p, acc(2*up, tau), acc(2*up+1, tau))
                    A(f"buffer_store_dwordx4 {v(p,4)}, {v(vL16)}, {s(WS,4)}, {s(sX2)} offen offset:{up*1024} sc1")
        elif kind == 'N':
            for sg in range(2):
                A(f"s_add_u32 {s(sX2)}, {s(sX1)}, {sg*262144}")
                for t in range(4):
                    p = PK + (sg*4+t)*4
                    pk(p, acc(t, 2*sg), acc(t, 2*sg+1))
                    A(f"buffer_store_dwordx4 {v(p,4)}, {v(vL16)}, {s(WS,4)}, {s(sX2)} offen offset:{t*1024} sc1")
        else:
            for tau in range(4):
                A(f"s_add_u32 {s(sX2)}, {s(sX1)}, {tau*HROW}")
                for t in range(2):
                    g_, u_ = acc(t, tau), acc(t+2, tau)
                    for r in range(0, 4, 2):
                        for base in (g_, u_):
                            A(f"v_cvt_pk_bf16_f32 {v(base+r+1)}, {v(base+r)}, {v(base+r+1)}")
                            A(f"v_lshlrev_b32 {v(base+r)}, 16, {v(base+r+1)}")
                            A(f"v_and_b32 {v(base+r+1)}, 0xffff0000, {v(base+r+1)}")
                    for r in range(4):
                        A(f"v_cmp_lt_f32 vcc, 0, {v(g_+r)}")
                        A(f"v_mul_f32 {v(PK+31)}, 0, {v(g_+r)}")
                        A("s_nop 0")
                        A(f"v_cndmask_b32 {v(g_+r)}, {v(PK+31)}, {v(g_+r)}, vcc")
                        A(f"v_mul_f32 {v(g_+r)}, {v(g_+r)}, {v(u_+r)}")
                p = PK + tau*4
                pk(p, acc(0, tau), acc(1, tau))
                A(f"buffer_store_dwordx4 {v(p,4)}, {v(vL16)}, {s(WS,4)}, {s(sX2)} offen sc1")
        A(f"s_lshl_b32 {s(sPrev)}, {s(sCh)}, {7 if kind == 'F' else 3}")
        A(f"s_add_u32 {s(sPrev)}, {s(sPrev)}, {s(sFl)}")
        A(f"s_mov_b32 {s(sCh)}, {s(sX0)}")
    end = A.uid("GE")
    A.label(top)
    body(0)
    A(f"s_cmp_ge_u32 {s(sCh)}, 32")
    A(f"s_cbranch_scc1 {end}")
    body(1)
    A(f"s_cmp_lt_u32 {s(sCh)}, 32")
    A(f"s_cbranch_scc1 {top}")
    A.label(end)
    A("s_waitcnt vmcnt(0)")
    A("s_barrier")
    sk = A.uid("GF")
    A(f"s_cmp_lt_i32 {s(sX3)}, 0")
    A(f"s_cbranch_scc1 {sk}")
    set_flag(A, s(sX3))
    A.label(sk)
    set_flag(A, s(sPrev))

def gemm_start(A, nst):
    A(f"v_lshlrev_b32 v8, 3, {v(vLane)}")
    A(f"s_mov_b32 {s(sX0)}, {F_LN}")
    wait_flags(A, 8, s(sX0), 10)
    wait_flags(A, 8, s(sX0), 10, imm=512)
    A(f"""
    s_barrier
    s_lshl_b32 {s(sX4)}, {s(sW)}, 14
    s_lshl_b32 {s(sX5)}, {s(sCh)}, 16
    s_add_u32 {s(sX5)}, {s(sX5)}, {s(sX4)}
    s_mov_b32 {s(sPrev)}, -1
    s_mov_b32 {s(sX3)}, -1
    v_mov_b32 v128, {v(vL16)}
    v_add_u32 v129, 0x10000, {v(vL16)}
    """)
    for u in range(16):
        A(f"s_add_u32 m0, {s(sX4)}, {u*1024}")
        A(f"s_add_u32 {s(sT3)}, {s(sX5)}, {u*1024}")
        A(f"buffer_load_dwordx4 {v(vL16)}, {s(WS,4)}, {s(sT3)} offen sc1 lds")
    A("s_waitcnt vmcnt(0)")

def stage1(A):
    QF, KF0, KF1, VF, M, ACC1 = 0, 16, 32, 48, 64, 128
    X0, X1, XM, P, KMF, VMF, OA, LA, ONE = 144, 148, 152, 156, 164, 180, 188, 204, 208
    t0, t1 = 214, 215
    vIdx, vKw, vTR, vVw, vVr, vNeg, vF = 220, 221, 222, 223, 224, 225, 226
    L_K, L_V = 0, 4096
    MSK = 60
    sSeg, sPhi, sEta = sCh, sPrev, sLim
    sP0, sP1 = 50, 51
    A(f"""
    s_and_b32 {s(sPhi)}, {s(sW)}, 1
    s_lshr_b32 {s(sEta)}, {s(sW)}, 1
    s_mov_b32 {s(sCc)}, 0x3e0293ee
    s_mov_b32 {s(sP0)}, 0x05040100
    s_mov_b32 {s(sP1)}, 0x07060302
    v_and_b32 v2, 15, {v(vLane)}
    v_lshrrev_b32 v3, 4, {v(vLane)}
    v_and_b32 v4, 3, {v(vLane)}
    v_bfe_u32 v5, {v(vLane)}, 2, 2
    v_mov_b32 v6, 0x4444
    v_mov_b32 v7, 0xEEEE
    v_cmp_gt_u32 vcc, 2, v4
    s_nop 1
    v_cndmask_b32 {v(vIdx)}, v7, v6, vcc
    ; vKw = L_K + (w&1)*2048 + c*32 + ((g+(c>>2))&3)*8
    v_add_u32 v6, v3, v5
    v_and_b32 v6, 3, v6
    v_lshlrev_b32 v6, 3, v6
    v_lshl_add_u32 v6, v2, 5, v6
    s_lshl_b32 {s(sX0)}, {s(sPhi)}, 11
    v_add_u32 {v(vKw)}, {s(sX0)}, v6
    v_add_u32 {v(vVw)}, {s(sX0)}, {v(vL16)}
    s_lshl_b32 {s(sX0)}, {s(sEta)}, 11
    v_add_u32 {v(vVr)}, {s(sX0)}, {v(vL16)}
    ; vTR = (l>>2)*32 + ((c'+g)&3)*8
    v_add_u32 v6, v3, v4
    v_and_b32 v6, 3, v6
    v_lshlrev_b32 v6, 3, v6
    v_lshrrev_b32 v7, 2, {v(vLane)}
    v_lshl_add_u32 {v(vTR)}, v7, 5, v6
    v_mov_b32 {v(vNeg)}, 0xff800000
    s_lshl_b32 {s(sX0)}, {s(sPhi)}, 4
    v_lshlrev_b32 v6, 2, v3
    v_sub_u32 v6, v2, v6
    v_add_u32 v6, {s(sX0)}, v6
    """)
    for kap in range(2):
        for r in range(4):
            A(f"v_cmp_le_i32 {s(MSK+(kap*4+r)*2,2)}, {16*kap+r}, v6")
    for r in range(5): A(f"v_mov_b32 {v(ONE+r)}, 0x3f803f80")
    A(f"v_mov_b32 {v(ONE+5)}, 0")
    A(f"""
    s_lshl_b32 {s(sX0)}, {s(sHd)}, 8
    s_add_u32 {s(sX0)}, {s(sX0)}, {F_KV}
    s_lshr_b32 {s(sX1)}, {s(sHd)}, 1
    s_lshl_b32 {s(sX1)}, {s(sX1)}, 8
    s_add_u32 {s(sX1)}, {s(sX1)}, {F_Q}
    v_mov_b32 v6, {s(sX0)}
    v_mov_b32 v7, {s(sX1)}
    v_and_b32 v8, 1, {v(vLane)}
    v_cmp_eq_u32 vcc, 1, v8
    s_nop 1
    v_cndmask_b32 {v(vF)}, v6, v7, vcc
    s_mov_b32 {s(sSeg)}, {s(sJ)}
    """)
    lp = A.uid("CR")
    A(f"""
    v_and_b32 v8, 31, {v(vLane)}
    v_lshlrev_b32 v8, 7, v8
    s_mov_b32 {s(sX0)}, {F_CH}
    """)
    A.label(lp)
    A(f"""
    buffer_load_dwordx2 v[10:11], v8, {s(WS,4)}, {s(sX0)} offen sc1
    s_sub_u32 {s(sRetry)}, {s(sRetry)}, 1
    s_cbranch_scc1 {FAIL}
    s_waitcnt vmcnt(0)
    v_and_b32 v11, 0x0fffffff, v11
    v_cmp_ne_u64 vcc, {s(sTag,2)}, v[10:11]
    s_cbranch_vccnz {lp}
    """)
    top = A.uid("S1")
    A.label(top)
    A(f"""
    s_lshr_b32 {s(sX0)}, {s(sSeg)}, 1
    s_lshl_b32 {s(sX0)}, {s(sX0)}, 3
    """)
    wait_flags(A, vF, s(sX0), t0)
    A(f"""
    s_lshl_b32 {s(sX0)}, {s(sSeg)}, 5
    s_add_u32 {s(sX0)}, {s(sX0)}, {s(sHd)}
    s_lshl_b32 {s(sX0)}, {s(sX0)}, 13
    s_lshl_b32 {s(sX1)}, {s(sPhi)}, 12
    s_add_u32 {s(sX1)}, {s(sX1)}, {s(sX0)}
    s_add_u32 {s(sX1)}, {s(sX1)}, {QX}
    s_add_u32 {s(sX2)}, {s(sX0)}, {KX}
    s_add_u32 {s(sX3)}, {s(sX0)}, {KX+4096}
    s_lshl_b32 {s(sX4)}, {s(sEta)}, 12
    s_add_u32 {s(sX4)}, {s(sX4)}, {s(sX0)}
    s_add_u32 {s(sX4)}, {s(sX4)}, {VX}
    """)
    for dst, so in ((QF, sX1), (KF0, sX2), (KF1, sX3), (VF, sX4)):
        for u in range(4):
            A(f"buffer_load_dwordx4 {v(dst+4*u,4)}, {v(vL16)}, {s(WS,4)}, {s(so)} offen offset:{u*1024} sc1")
    A(f"""
    s_lshl_b32 {s(sX0)}, {s(sSeg)}, 13
    s_add_u32 {s(sX0)}, {s(sX0)}, {MPUB}
    s_add_u32 {s(sX1)}, {s(sX0)}, 4096
    """)
    for r in range(0, 16, 2): A(f"v_mov_b64 {v(ACC1+r,2)}, 0")
    A("s_waitcnt vmcnt(4)")
    for u in range(4):
        A(f"v_mfma_f32_16x16x32_bf16 {v(X0,4)}, {v(KF0+4*u,4)}, {v(QF+4*u,4)}, {'0' if u == 0 else v(X0,4)}")
        A(f"v_mfma_f32_16x16x32_bf16 {v(X1,4)}, {v(KF1+4*u,4)}, {v(QF+4*u,4)}, {'0' if u == 0 else v(X1,4)}")
    A("s_nop 7")
    for r in range(8): A(f"v_cndmask_b32 {v(X0+r)}, {v(vNeg)}, {v(X0+r)}, {s(MSK+2*r,2)}")
    can = A.uid("CA"); full = A.uid("FU")
    A.label(can)
    A(f"""
    buffer_load_dwordx4 {v(M+28,4)}, {v(vL16)}, {s(WS,4)}, {s(sX1)} offen offset:3072 sc1
    s_sub_u32 {s(sRetry)}, {s(sRetry)}, 1
    s_cbranch_scc1 {FAIL}
    s_waitcnt vmcnt(0)
    v_cmp_eq_u32 vcc, -1, {v(M+28)}
    s_cbranch_vccz {full}
    s_sleep 8
    s_branch {can}
    """)
    A.label(full)
    for b in range(8):
        A(f"buffer_load_dwordx4 {v(M+4*b,4)}, {v(vL16)}, {s(WS,4)}, {s(sX0 if b < 4 else sX1)} offen offset:{(b%4)*1024} sc1")
    A(f"s_sub_u32 {s(sRetry)}, {s(sRetry)}, 1")
    A(f"s_cbranch_scc1 {FAIL}")
    A("s_waitcnt vmcnt(0)")
    A(f"v_max_u32 {v(t0)}, {v(M)}, {v(M+2)}")
    for b in range(1, 8): A(f"v_max3_u32 {v(t0)}, {v(t0)}, {v(M+4*b)}, {v(M+4*b+2)}")
    A(f"v_cmp_eq_u32 vcc, -1, {v(t0)}")
    A(f"s_cbranch_vccnz {full}")
    MP = 96
    for b in range(8):
        m, p = M+4*b, MP+4*b
        A(f"v_perm_b32 {v(p)}, {v(m+2)}, {v(m)}, {s(sP0)}")
        A(f"v_perm_b32 {v(p+1)}, {v(m+2)}, {v(m)}, {s(sP1)}")
        A(f"v_perm_b32 {v(p+2)}, {v(m+3)}, {v(m+1)}, {s(sP0)}")
        A(f"v_perm_b32 {v(p+3)}, {v(m+3)}, {v(m+1)}, {s(sP1)}")
    A("s_nop 1")
    for b in range(8):
        for t in range(4):
            A(f"v_smfmac_f32_16x16x64_bf16 {v(ACC1+4*t,4)}, {v(MP+4*b,4)}, {a((t*16+2*b)*4,8)}, {v(vIdx)}")
    kv = A.uid("KV"); jn = A.uid("KJ")
    A(f"s_cmp_lg_u32 {s(sEta)}, 0")
    A("s_nop 6")
    A(f"s_cbranch_scc1 {kv}")
    for t in range(4):
        x = ACC1+4*t
        A(f"v_add_f32 {v(x)}, {v(x)}, {v(x+2)}")
        A(f"v_add_f32 {v(x+1)}, {v(x+1)}, {v(x+3)}")
        A(f"v_cvt_pk_bf16_f32 {v(x)}, {v(x)}, {v(x+1)}")
        A(f"ds_write_b32 {v(vKw)}, {v(x)} offset:{L_K + (t>>1)*1024 + (t&1)*512}")
    A(f"s_branch {jn}")
    A.label(kv)
    for r in range(8): A(f"v_cvt_pk_bf16_f32 {v(M+r)}, {v(ACC1+2*r)}, {v(ACC1+2*r+1)}")
    A(f"ds_write_b128 {v(vVw)}, {v(M,4)} offset:{L_V}")
    A(f"ds_write_b128 {v(vVw)}, {v(M+4,4)} offset:{L_V+1024}")
    A.label(jn)
    A("s_waitcnt lgkmcnt(0)")
    A("s_barrier")
    for u in range(4):
        for j4 in range(2):
            A(f"ds_read_b64_tr_b16 {v(KMF+4*u+2*j4,2)}, {v(vTR)} offset:{L_K+u*1024+j4*512}")
    A(f"ds_read_b128 {v(VMF,4)}, {v(vVr)} offset:{L_V}")
    A(f"ds_read_b128 {v(VMF+4,4)}, {v(vVr)} offset:{L_V+1024}")
    A(f"""
    v_max3_f32 {v(t0)}, {v(X0)}, {v(X0+1)}, {v(X0+2)}
    v_max3_f32 {v(t1)}, {v(X0+3)}, {v(X1)}, {v(X1+1)}
    v_max3_f32 {v(t0)}, {v(t0)}, {v(X1+2)}, {v(X1+3)}
    v_max_f32 {v(t0)}, {v(t0)}, {v(t1)}
    s_waitcnt lgkmcnt(0)
    s_barrier
    """)
    for u in range(4):
        A(f"v_mfma_f32_16x16x32_bf16 {v(XM,4)}, {v(KMF+4*u,4)}, {v(QF+4*u,4)}, {'0' if u == 0 else v(XM,4)}")
    A("s_nop 7")
    A(f"v_max3_f32 {v(t0)}, {v(t0)}, {v(XM)}, {v(XM+1)}")
    xmax(A, t0, t1)
    A(f"v_mul_f32 {v(t0)}, {s(sCc)}, {v(t0)}")
    for r in range(10): A(f"v_fma_f32 {v(X0+r)}, {v(X0+r)}, {s(sCc)}, -{v(t0)}")
    for r in range(10): A(f"v_exp_f32 {v(X0+r)}, {v(X0+r)}")
    A("s_nop 0")
    for r in range(5): A(f"v_cvt_pk_bf16_f32 {v(P+r)}, {v(X0+2*r)}, {v(X0+2*r+1)}")
    A(f"v_cvt_pk_bf16_f32 {v(P+5)}, {v(XM)}, {v(XM+1)}")
    A("s_nop 1")
    A(f"v_mfma_f32_16x16x32_bf16 {v(LA,4)}, {v(ONE,4)}, {v(P,4)}, 0")
    for t in range(4):
        A("s_nop 0")
        A(f"v_mfma_f32_16x16x32_bf16 {v(OA+4*t,4)}, {v(VF+4*t,4)}, {v(P,4)}, 0")
    A("s_nop 0")
    A(f"v_mfma_f32_16x16x16_bf16 {v(LA,4)}, {v(ONE+4,2)}, {v(P+4,2)}, {v(LA,4)}")
    for t in range(4):
        A("s_nop 0")
        A(f"v_mfma_f32_16x16x16_bf16 {v(OA+4*t,4)}, {v(VMF+2*t,2)}, {v(P+4,2)}, {v(OA+4*t,4)}")
    A(f"""
    v_rcp_f32 {v(t0)}, {v(LA)}
    s_lshl_b32 {s(sX0)}, {s(sSeg)}, 1
    s_add_u32 {s(sX0)}, {s(sX0)}, {s(sPhi)}
    s_lshl_b32 {s(sX0)}, {s(sX0)}, 6
    s_lshl_b32 {s(sX1)}, {s(sHd)}, 1
    s_add_u32 {s(sX1)}, {s(sX1)}, {s(sEta)}
    s_add_u32 {s(sX0)}, {s(sX0)}, {s(sX1)}
    s_lshl_b32 {s(sX1)}, {s(sX0)}, 11
    s_add_u32 {s(sX1)}, {s(sX1)}, {OB}
    s_lshl_b32 {s(sX0)}, {s(sX0)}, 3
    s_add_u32 {s(sX0)}, {s(sX0)}, {F_O}
    """)
    for r in range(16): A(f"v_mul_f32 {v(OA+r)}, {v(OA+r)}, {v(t0)}")
    for r in range(8): A(f"v_cvt_pk_bf16_f32 {v(P+r)}, {v(OA+2*r)}, {v(OA+2*r+1)}")
    A(f"buffer_store_dwordx4 {v(P,4)}, {v(vL16)}, {s(WS,4)}, {s(sX1)} offen sc1")
    A(f"buffer_store_dwordx4 {v(P+4,4)}, {v(vL16)}, {s(WS,4)}, {s(sX1)} offen offset:1024 sc1")
    A("s_waitcnt vmcnt(0)")
    set_flag(A, s(sX0))
    A(f"""
    s_add_u32 {s(sSeg)}, {s(sSeg)}, 4
    s_cmp_lt_u32 {s(sSeg)}, 64
    s_cbranch_scc1 {top}
    """)

def stage2(A):
    WD, BUF, AS, AF = 8, 96, 224, 232
    XR = 240
    vF8, vFH, vXo, vLw = 244, 245, 246, 247
    sRT = sCh
    A("s_barrier")
    srd(A, SA, 40, 0x400000)
    srd(A, SB, 80, 1376*512*2)
    srd(A, SX, 0, 2048*512*2)
    srd(A, SO, 88, 2048*512*2)
    A(f"""
    s_lshl_b32 {s(sX0)}, {s(sW)}, 15
    s_lshl_b32 {s(sX1)}, {s(sHd)}, 6
    s_lshl_b32 {s(sX2)}, {s(sW)}, 20
    s_add_u32 {s(sX2)}, {s(sX2)}, {s(sX1)}
    s_mul_i32 {s(sX4)}, {s(sW)}, {352*1024}
    s_add_u32 {s(sX4)}, {s(sX4)}, {s(sX1)}
    """)
    vD, vT = w_addrs(A, [1024], sX0)
    blocks = []
    for k in range(6):
        blocks.append((SB, sX4, k*65536, 1024, [[WD + (t*11+2*k+uu)*4 if 2*k+uu < 11 else None for uu in range(2)] for t in range(2)]))
    for k in range(16):
        blocks.append((SA, sX2, k*65536, 1024, [[256 + (t*32+2*k+uu)*4 for uu in range(2)] for t in range(2)]))
    load_w(A, blocks, sX0, 8, vD, vT)
    A(f"""
    v_lshlrev_b32 {v(vF8)}, 3, {v(vLane)}
    v_min_u32 {v(vFH)}, 10, {v(vLane)}
    v_lshlrev_b32 {v(vFH)}, 3, {v(vFH)}
    v_and_b32 v1, 15, {v(vLane)}
    v_lshrrev_b32 v2, 4, {v(vLane)}
    v_lshlrev_b32 v1, 10, v1
    v_lshl_add_u32 v1, v2, 4, v1
    v_add_u32 {v(vXo)}, {s(sX1)}, v1
    s_lshl_b32 {s(sX0)}, {s(sW)}, 12
    v_add_u32 {v(vLw)}, {s(sX0)}, {v(vL16)}
    s_mov_b32 {s(sRT)}, {s(sJ)}
    s_barrier
    """)
    top = A.uid("S2")
    A.label(top)
    A(f"""
    s_lshr_b32 {s(sX0)}, {s(sRT)}, 2
    s_lshl_b32 {s(sX0)}, {s(sX0)}, 7
    s_add_u32 {s(sX0)}, {s(sX0)}, {F_H}
    """)
    wait_flags(A, vFH, s(sX0), 0, sleep=16)
    A(f"""
    s_mul_i32 {s(sX0)}, {s(sRT)}, {HROW}
    s_mul_i32 {s(sX1)}, {s(sW)}, {11*1024}
    s_add_u32 {s(sX0)}, {s(sX0)}, {s(sX1)}
    s_add_u32 {s(sX0)}, {s(sX0)}, {HB}
    s_lshl_b32 {s(sX5)}, {s(sRT)}, 14
    """)
    for k in range(11):
        if k and k % 4 == 0: A(f"s_add_u32 {s(sX0)}, {s(sX0)}, 4096")
        A(f"buffer_load_dwordx4 {v(BUF+4*k,4)}, {v(vL16)}, {s(WS,4)}, {s(sX0)} offen offset:{(k%4)*1024} sc1")
    A(f"buffer_load_dwordx4 {v(XR,4)}, {v(vXo)}, {s(SX,4)}, {s(sX5)} offen")
    for k in range(11):
        A(f"s_waitcnt vmcnt({11-k})")
        for t in range(2):
            A(f"v_mfma_f32_16x16x32_bf16 {v(AF+4*t,4)}, {v(WD+(t*11+k)*4,4)}, {v(BUF+4*k,4)}, {'0' if k == 0 else v(AF+4*t,4)}")
    A(f"""
    s_lshl_b32 {s(sX0)}, {s(sRT)}, 9
    s_add_u32 {s(sX0)}, {s(sX0)}, {F_O}
    """)
    wait_flags(A, vF8, s(sX0), 0, sleep=8)
    A(f"""
    s_lshl_b32 {s(sX0)}, {s(sRT)}, 17
    s_lshl_b32 {s(sX1)}, {s(sW)}, 15
    s_add_u32 {s(sX0)}, {s(sX0)}, {s(sX1)}
    s_add_u32 {s(sX0)}, {s(sX0)}, {OB}
    """)
    for k in range(32):
        if k and k % 4 == 0: A(f"s_add_u32 {s(sX0)}, {s(sX0)}, 4096")
        A(f"buffer_load_dwordx4 {v(BUF+4*k,4)}, {v(vL16)}, {s(WS,4)}, {s(sX0)} offen offset:{(k%4)*1024} sc1")
    A(f"ds_write_b128 {v(vLw)}, {v(AF,4)} offset:2048")
    A(f"ds_write_b128 {v(vLw)}, {v(AF+4,4)} offset:3072")
    for k in range(32):
        A(f"s_waitcnt vmcnt({31-k})")
        for t in range(2):
            A(f"v_mfma_f32_16x16x32_bf16 {v(AS+4*t,4)}, {a((t*32+k)*4,4)}, {v(BUF+4*k,4)}, {'0' if k == 0 else v(AS+4*t,4)}")
    A("s_nop 7")
    A(f"ds_write_b128 {v(vLw)}, {v(AS,4)}")
    A(f"ds_write_b128 {v(vLw)}, {v(AS+4,4)} offset:1024")
    A("s_waitcnt lgkmcnt(0)")
    A("s_barrier")
    sk = A.uid("E2")
    A(f"s_cmp_lg_u32 {s(sW)}, 0")
    A(f"s_cbranch_scc1 {sk}")
    for w_ in range(1, 4):
        for q in range(4):
            A(f"ds_read_b128 {v(BUF+(w_-1)*16+q*4,4)}, {v(vL16)} offset:{w_*4096+q*1024}")
    A("s_waitcnt lgkmcnt(0)")
    for r in range(16):
        A(f"v_add_f32 {v(AS+r)}, {v(AS+r)}, {v(BUF+r)}")
        A(f"v_add_f32 {v(BUF+16+r)}, {v(BUF+16+r)}, {v(BUF+32+r)}")
    for r in range(16): A(f"v_add_f32 {v(AS+r)}, {v(AS+r)}, {v(BUF+16+r)}")
    def rb2(x):
        A(f"v_cvt_pk_bf16_f32 {v(x+1)}, {v(x)}, {v(x+1)}")
        A(f"v_lshlrev_b32 {v(x)}, 16, {v(x+1)}")
        A(f"v_and_b32 {v(x+1)}, 0xffff0000, {v(x+1)}")
    for r in range(0, 16, 2): rb2(AS+r)
    T = BUF
    for r in range(8): A(f"v_mul_f32 {v(T+r)}, 0xbfb8aa3b, {v(AF+r)}")
    for r in range(8): A(f"v_exp_f32 {v(T+r)}, {v(T+r)}")
    A("s_nop 0")
    for r in range(8): A(f"v_add_f32 {v(T+r)}, 1.0, {v(T+r)}")
    for r in range(8): A(f"v_rcp_f32 {v(T+r)}, {v(T+r)}")
    A("s_nop 0")
    for r in range(8): A(f"v_mul_f32 {v(AF+r)}, {v(AF+r)}, {v(T+r)}")
    for r in range(0, 8, 2): rb2(AF+r)
    for r in range(8): A(f"v_mul_f32 {v(AS+r)}, {v(AS+r)}, {v(AF+r)}")
    for r in range(0, 8, 2): rb2(AS+r)
    for r in range(4):
        A(f"v_lshlrev_b32 {v(T+2*r)}, 16, {v(XR+r)}")
        A(f"v_and_b32 {v(T+2*r+1)}, 0xffff0000, {v(XR+r)}")
    for r in range(8): A(f"v_add_f32 {v(AS+r)}, {v(AS+r)}, {v(T+r)}")
    for r in range(4): A(f"v_cvt_pk_bf16_f32 {v(T+8+r)}, {v(AS+2*r)}, {v(AS+2*r+1)}")
    A(f"buffer_store_dwordx4 {v(T+8,4)}, {v(vXo)}, {s(SO,4)}, {s(sX5)} offen")
    A.label(sk)
    A(f"""
    s_barrier
    s_add_u32 {s(sRT)}, {s(sRT)}, 6
    s_cmp_lt_u32 {s(sRT)}, 128
    s_cbranch_scc1 {top}
    """)

def worker_main(A, lab_end):
    common_setup(A)
    LQ, LF = A.uid("WQ"), A.uid("WFF")
    A(f"""
    s_cmp_ge_u32 {s(sWI)}, 192
    s_cbranch_scc1 {LF}
    s_cmp_ge_u32 {s(sWI)}, 128
    s_cbranch_scc1 {LQ}
    """)
    def qkv_blocks(sr, sb):
        bl = []
        for k in range(8):
            for pr in range(2):
                bl.append((sr, sb, k*64*8192 + pr*64, 8192, [[256 + ((2*pr+t)*16 + 2*k+uu)*4 for uu in range(2)] for t in range(2)]))
        return bl
    A(f"""
    s_lshr_b32 {s(sHd)}, {s(sWI)}, 2
    s_and_b32 {s(sJ)}, {s(sWI)}, 3
    s_load_dwordx4 {s(sX0,4)}, s[0:1], 24
    s_mov_b32 {s(SA+2)}, 0x400000
    s_mov_b32 {s(SA+3)}, 0x20000
    s_cmp_lt_u32 {s(sW)}, 2
    s_waitcnt lgkmcnt(0)
    s_cselect_b32 {s(SA)}, {s(sX0)}, {s(sX2)}
    s_cselect_b32 {s(SA+1)}, {s(sX1)}, {s(sX3)}
    s_and_b32 {s(sX4)}, {s(sW)}, 1
    s_lshl_b32 {s(sX1)}, {s(sX4)}, 7
    s_lshl_b32 {s(sX2)}, {s(sHd)}, 8
    s_add_u32 {s(sX1)}, {s(sX1)}, {s(sX2)}
    s_add_u32 {s(sFl)}, {s(sX2)}, {F_KV}
    s_lshl_b32 {s(sX0)}, {s(sW)}, 15
    """)
    vD, vT = w_addrs(A, [8192], sX0)
    load_w(A, qkv_blocks(SA, sX1), sX0, 8, vD, vT)
    A(f"""
    s_mov_b32 {s(sCh)}, {s(sJ)}
    s_mov_b32 {s(sStep)}, 4
    s_and_b32 {s(sX4)}, {s(sW)}, 1
    s_lshl_b32 {s(sOut)}, {s(sHd)}, 13
    s_lshl_b32 {s(sX0)}, {s(sX4)}, 11
    s_add_u32 {s(sX0)}, {s(sX0)}, {KX}
    s_lshl_b32 {s(sX1)}, {s(sX4)}, 12
    s_add_u32 {s(sX1)}, {s(sX1)}, {VX}
    s_cmp_lt_u32 {s(sW)}, 2
    s_cselect_b32 {s(sX0)}, {s(sX0)}, {s(sX1)}
    s_add_u32 {s(sOut)}, {s(sOut)}, {s(sX0)}
    """)
    gemm_start(A, 8)
    LV, LS1, LT, LS2 = A.uid("WV"), A.uid("WS1"), A.uid("WT"), A.uid("WS2")
    A(f"s_cmp_lt_u32 {s(sW)}, 2")
    A(f"s_cbranch_scc1 {LT}")
    gemm_phase(A, 'N')
    A.label(LS1)
    stage1(A)
    A(f"s_branch {lab_end}")
    A.label(LQ)
    A(f"""
    s_sub_u32 {s(sX0)}, {s(sWI)}, 128
    s_lshr_b32 {s(sHd)}, {s(sX0)}, 2
    s_and_b32 {s(sJ)}, {s(sX0)}, 3
    s_lshl_b32 {s(sX0)}, {s(sX0)}, 1
    """)
    layernorm(A, 2)
    srd(A, SA, 16, 0x400000)
    A(f"""
    s_lshl_b32 {s(sX1)}, {s(sW)}, 7
    s_lshl_b32 {s(sX2)}, {s(sHd)}, 9
    s_add_u32 {s(sX1)}, {s(sX1)}, {s(sX2)}
    s_lshl_b32 {s(sFl)}, {s(sHd)}, 8
    s_add_u32 {s(sFl)}, {s(sFl)}, {F_Q}
    s_lshl_b32 {s(sX0)}, {s(sW)}, 15
    """)
    vD, vT = w_addrs(A, [8192], sX0)
    load_w(A, qkv_blocks(SA, sX1), sX0, 8, vD, vT)
    A(f"""
    s_mov_b32 {s(sCh)}, {s(sJ)}
    s_mov_b32 {s(sStep)}, 4
    s_lshl_b32 {s(sOut)}, {s(sHd)}, 14
    s_lshr_b32 {s(sX0)}, {s(sW)}, 1
    s_lshl_b32 {s(sX0)}, {s(sX0)}, 13
    s_and_b32 {s(sX1)}, {s(sW)}, 1
    s_lshl_b32 {s(sX1)}, {s(sX1)}, 11
    s_add_u32 {s(sOut)}, {s(sOut)}, {s(sX0)}
    s_add_u32 {s(sOut)}, {s(sOut)}, {s(sX1)}
    s_add_u32 {s(sOut)}, {s(sOut)}, {QX}
    """)
    gemm_start(A, 8)
    A.label(LT)
    gemm_phase(A, 'T')
    A(f"s_cmp_lt_u32 {s(sWI)}, 128")
    A(f"s_cbranch_scc1 {LS1}")
    A(f"s_branch {LS2}")
    A.label(LF)
    A(f"""
    s_sub_u32 {s(sX0)}, {s(sWI)}, 192
    s_mul_i32 {s(sHd)}, {s(sX0)}, 86
    s_lshr_b32 {s(sHd)}, {s(sHd)}, 8          ; /3
    s_mul_i32 {s(sX1)}, {s(sHd)}, 3
    s_sub_u32 {s(sCh)}, {s(sX0)}, {s(sX1)}
    s_cmp_eq_u32 {s(sHd)}, 10
    s_cselect_b32 {s(sStep)}, 2, 3
    """)
    srd(A, SA, 64, 512*1376*2)
    srd(A, SB, 72, 512*1376*2)
    A(f"""
    s_lshl_b32 {s(sX2)}, {s(sHd)}, 2
    s_add_u32 {s(sX2)}, {s(sX2)}, {s(sW)}      ; slice
    s_lshl_b32 {s(sX1)}, {s(sX2)}, 6
    s_lshl_b32 {s(sOut)}, {s(sX2)}, 10
    s_add_u32 {s(sOut)}, {s(sOut)}, {HB}
    s_lshl_b32 {s(sFl)}, {s(sHd)}, 3
    s_add_u32 {s(sFl)}, {s(sFl)}, {F_H}
    s_lshl_b32 {s(sX0)}, {s(sW)}, 15
    """)
    vD, vT = w_addrs(A, [2752], sX0)
    bl = []
    for k in range(8):
        for pr in range(2):
            bl.append((SA if pr == 0 else SB, sX1, k*64*2752, 2752, [[256 + ((2*pr+t)*16 + 2*k+uu)*4 for uu in range(2)] for t in range(2)]))
    load_w(A, bl, sX0, 8, vD, vT)
    gemm_start(A, 4)
    gemm_phase(A, 'F')
    A.label(LS2)
    A(f"""
    s_sub_u32 {s(sX0)}, {s(sWI)}, 128
    s_and_b32 {s(sHd)}, {s(sX0)}, 15
    s_lshr_b32 {s(sJ)}, {s(sX0)}, 4
    """)
    stage2(A)
    A(f"s_branch {lab_end}")
```

```python
import sys
from asmlib import *
from layout import *
import chain as C
import worker as W
from gen_chain_test import header, footer, get_tag, chain_sync, chain_sync_wait

DIAGS = False
def diag(A, slot):
    if not DIAGS: return
    A(f"""
    s_memrealtime s[96:97]
    s_waitcnt lgkmcnt(0)
    v_mov_b32 v249, s96
    v_mov_b32 v248, 0
    s_lshl_b32 s98, s2, 6
    s_add_u32 s98, s98, {DIAG + 0x10000 + 4*slot}
    buffer_store_dword v249, v248, {s(C.WS,4)}, s98 offen
    """)

def build(force_slow=False):
    A = Asm()
    A(f"""
    s_cmp_ge_u32 s2, 256
    s_cbranch_scc1 L_END
    v_lshrrev_b32 v1, 6, v0
    s_nop 0
    v_readfirstlane_b32 {s(C.sW)}, v1
    """)
    C.srd(A, C.WS, 104, WS_SIZE)
    get_tag(A, "L_FAIL")
    A(f"""
    s_and_b32 s3, s2, 7
    s_lshr_b32 {s(C.sH)}, s2, 3
    s_cmp_eq_u32 s3, 0
    s_cbranch_scc1 L_CHAIN
    s_sub_u32 s3, s3, 1
    s_lshl_b32 s3, s3, 5
    s_add_u32 {s(W.sWI)}, {s(C.sH)}, s3
    """)
    W.worker_main(A, "L_END")
    A.label("L_FAIL")
    A(f"""
    v_mov_b32 v20, 0xdead
    v_mov_b32 v21, 16
    buffer_store_dword v20, v21, s[16:19], 0 offen
    """)
    A.label("L_END")
    A("s_waitcnt vmcnt(0)")
    A("s_endpgm")
    A.label("L_CHAIN")
    C.chain_setup(A)
    C.chain_init_comm(A)
    chain_sync(A, "L_FAIL2")
    A("s_waitcnt vmcnt(0)")
    C.chain_load_weights(A)
    C.chain_prologue2(A)
    A(f"s_mov_b32 {s(C.sRetry)}, 0xffffff")
    C.kv_poll(A, "L_FAIL2", first=True)
    C.prefetch_kv(A, 0)
    chain_sync_wait(A, "L_FAIL2")
    A(f"s_mov_b32 {s(C.sRetry)}, 0xffffff")
    C.pre_step(A)
    A("s_waitcnt vmcnt(0) lgkmcnt(0)")
    A("s_barrier")
    A("s_branch L_SLOW" if force_slow else "s_cbranch_vccnz L_SLOW")
    C.chain_loop(A, "", "L_EXIT", "L_FAIL2")
    A.label("L_SLOW")
    C.chain_loop(A, "sc1", "L_EXIT", "L_FAIL2")
    A.label("L_EXIT")
    C.chain_exit(A)
    A("s_waitcnt vmcnt(0)")
    A("s_endpgm")
    A.label("L_FAIL2")
    A(f"""
    v_mov_b32 v20, 0xdeae
    v_mov_b32 v21, 20
    buffer_store_dword v20, v21, s[16:19], 0 offen
    s_waitcnt vmcnt(0)
    s_endpgm
    """)
    check_hazards(A.lines)
    return header(C.LDS_CHAIN) + A.text() + footer()

if __name__ == "__main__":
    out = sys.argv[1] if len(sys.argv) > 1 else f"cdna_kernels/{NAME}.s"
    slow = False
    for kv in sys.argv[2:]:
        k_, v_ = kv.split("=")
        if k_ == "SLOW": slow = bool(int(v_))
        elif hasattr(C, k_): setattr(C, k_, int(v_))
        elif hasattr(W, k_): setattr(W, k_, int(v_))
        else: globals()[k_] = int(v_)
    open(out, "w").write(build(slow))
```
